```python
import torch

def _softmax(x, axis=-1):
    return torch.softmax(x, dim=axis)
def _gelu(x):
    return torch.nn.functional.gelu(x, approximate="tanh")
def _silu(x):
    return torch.nn.functional.silu(x)
def _sigmoid(x):
    return torch.sigmoid(x)
def _layernorm(x, axis=-1, eps=1e-5):
    m = x.mean(dim=axis, keepdim=True)
    v = x.var(dim=axis, keepdim=True, unbiased=False)
    return (x - m) / torch.sqrt(v + eps)
def _scatter_add(tgt, idx, src, axis=0):
    return tgt.clone().index_add_(axis, idx, src)
def _segment_sum(src, seg, n):
    out = torch.zeros((n,) + src.shape[1:], dtype=src.dtype)
    return out.index_add_(0, seg, src)
def _pad(x, pw):
    flat = tuple(v for pair in reversed(pw) for v in pair)
    return torch.nn.functional.pad(x, flat)

kernel_name = 'concat_heads__mha_block__linear_attn_block__prompt'

def setup_inputs():

    _w = (lambda a: (lambda t: t.to(torch.bfloat16) if t.is_floating_point() else t)(torch.as_tensor(a)))
    def _A_setup():
        B, S, D, H = 1, 2048, 1024, 32
        return {
            "x": _w((lambda *s: torch.randn(*s, dtype=torch.bfloat16) * 0.2)(B, S, D)),
            "wqkv": _w((lambda *s: torch.randn(*s, dtype=torch.bfloat16) * 0.2)(D, 3 * D)),
            "wo": _w((lambda *s: torch.randn(*s, dtype=torch.bfloat16) * 0.05)(D, D)),
        }
    _A_in = _A_setup()

    def _B_setup():
        B, S, D = 1, 2048, 1024
        return {
            "x": _w((lambda *s: torch.randn(*s, dtype=torch.bfloat16) * 0.05)(B, S, D)),
            "wqkv": _w((lambda *s: torch.randn(*s, dtype=torch.bfloat16) * 1.6)(D, 3 * D)),
            "wo": _w((lambda *s: torch.randn(*s, dtype=torch.bfloat16) * 0.1)(D, D)),
        }
    _B_in = _B_setup()

    return {
        "A_x": _A_in["x"],
        "A_wqkv": _A_in["wqkv"],
        "A_wo": _A_in["wo"],
        "B_x": _B_in["x"],
        "B_wqkv": _B_in["wqkv"],
        "B_wo": _B_in["wo"],
    }

def reference(A_x, A_wqkv, A_wo, B_x, B_wqkv, B_wo):
    def _A_ref(x, wqkv, wo):
        B, S, D = x.shape
        H = 32
        Dh = D // H
        qkv = (lambda x, *d: x.permute(*d))((x @ wqkv).reshape(B, S, 3, H, Dh), 2, 0, 3, 1, 4)
        q, k, v = qkv[0], qkv[1], qkv[2]
        scores = torch.einsum("bhqd,bhkd->bhqk", q, k) * (Dh ** -0.5)
        p = _softmax(scores, axis=-1)
        o = torch.einsum("bhqk,bhkd->bhqd", p, v)
        return (lambda x, *d: x.permute(*d))(o, 0, 2, 1, 3).reshape(B, S, D) @ wo

    def _B_ref(x, wqkv, wo):
        B, S, D = x.shape
        H = 32; Dh = D // H
        qkv = (lambda x, *d: x.permute(*d))((x @ wqkv).reshape(B, S, 3, H, Dh), 2, 0, 3, 1, 4)
        q, k, v = qkv[0], qkv[1], qkv[2]
        phi = lambda t: torch.where(t > 0, t + 1, torch.exp(t)) + 1e-6
        pq, pk = phi(q), phi(k)
        kv = torch.einsum("bhsd,bhse->bhde", pk, v)
        z = torch.einsum("bhsd->bhd", pk)
        num = torch.einsum("bhqd,bhde->bhqe", pq, kv)
        den = torch.einsum("bhqd,bhd->bhq", pq, z)[..., None] + 1e-6
        o = num / den
        return (lambda x, *d: x.permute(*d))(o, 0, 2, 1, 3).reshape(B, S, D) @ wo

    a = _A_ref(A_x, A_wqkv, A_wo)
    b = _B_ref(B_x, B_wqkv, B_wo)
    return torch.concatenate([a, b], axis=-1)
```

```python
import struct


def f32bits(x):
    return struct.unpack("<I", struct.pack("<f", x))[0]


def vr(b, n=1):
    return f"v{b}" if n == 1 else f"v[{b}:{b+n-1}]"


def sr(b, n=1):
    return f"s{b}" if n == 1 else f"s[{b}:{b+n-1}]"


class Asm:
    def __init__(self):
        self.lines = []
        self.ldsq = []

    def __call__(self, s):
        for l in s.strip("\n").split("\n"):
            self.lines.append("    " + l.strip())

    def label(self, l):
        self.lines.append(l + ":")

    def raw(self, s):
        self.lines.append(s)

    def comment(self, s):
        self.lines.append("    ; " + s)

    def ds(self, text, dst_base=None, n=0):
        self(text)
        regs = set(range(dst_base, dst_base + n)) if dst_base is not None else set()
        self.ldsq.append(regs)

    def need(self, *ranges):
        regs = set()
        for b, n in ranges:
            regs |= set(range(b, b + n))
        last = -1
        for i, q in enumerate(self.ldsq):
            if q & regs:
                last = i
        if last >= 0:
            cnt = len(self.ldsq) - 1 - last
            cnt = min(cnt, 15)
            self(f"s_waitcnt lgkmcnt({cnt})")
            self.ldsq = self.ldsq[len(self.ldsq) - cnt:] if cnt else []

    def lds_drain(self):
        if self.ldsq:
            self("s_waitcnt lgkmcnt(0)")
            self.ldsq = []

    def text(self):
        return "\n".join(self.lines) + "\n"


def kernel_header(name):
    return f""".globl {name}
.p2align 8
.type {name},@function
{name}:
"""


def kernel_desc(name, nvgpr, accum=None, nsgpr=102):
    if accum is None:
        accum = (nvgpr + 3) // 4 * 4
    return f""".amdhsa_kernel {name}
  .amdhsa_next_free_vgpr {nvgpr}
  .amdhsa_next_free_sgpr {nsgpr}
  .amdhsa_accum_offset {accum}
  .amdhsa_group_segment_fixed_size 0
  .amdhsa_kernarg_size 72
  .amdhsa_user_sgpr_count 2
  .amdhsa_user_sgpr_kernarg_segment_ptr 1
  .amdhsa_system_sgpr_workgroup_id_x 1
.end_amdhsa_kernel
"""
```

```python
from asmlib import *
from gemm2 import MB, WS_Q, WS_KV, WS_PQ, WS_OA, WS_OB, WS_KVP, WS_ZP, WS_SIZE, stamp, stamp_out

NSLOT = 4
SLOT = 32768
LDS_B = NSLOT * SLOT
LDS_TOTAL = LDS_B + 16384

V_L16 = 2
V_A = 3
V_B = 4
V_T = 5
Q = 8
NEGM = 16
S = [32, 48]
P = 64
O = 80
L = 96
SEL = 100
KB = [104, 112]
VB = [120, 128]
PQ = 136
BL = 144
NUM = 208
DEN = 224
NV = 240


def mf32(d, a_, b_, c):
    return f"v_mfma_f32_32x32x16_bf16 {vr(d,16)}, {vr(a_,4)}, {vr(b_,4)}, " + (c if isinstance(c, str) else vr(c, 16))


def mf16(d, a_, b_, c):
    return f"v_mfma_f32_16x16x32_bf16 {vr(d,4)}, {vr(a_,4)}, {vr(b_,4)}, " + (c if isinstance(c, str) else vr(c, 4))


def max16(a, dst, src, extra=None):
    a(f"v_max3_f32 v{dst}, v{src}, v{src+1}, v{src+2}")
    for k in range(6):
        a(f"v_max3_f32 v{dst}, v{dst}, v{src+3+2*k}, v{src+4+2*k}")
    if extra is None:
        a(f"v_max_f32 v{dst}, v{dst}, v{src+15}")
    else:
        a(f"v_max3_f32 v{dst}, v{dst}, v{src+15}, v{extra}")


def negm_from(a, m, tmp):
    a(f"""
    v_mov_b32 v{tmp}, v{m}
    s_nop 1
    v_permlane32_swap_b32 v{m}, v{tmp}
    s_nop 1
    v_max_f32 v{m}, v{m}, v{tmp}
    """)
    for r in range(16):
        a(f"v_mul_f32 v{NEGM+r}, -1.0, v{m}")


def attn_kernel(name, dbg="", order=None, prio=0):
    a = Asm()
    a.raw(kernel_header(name))
    a(f"""
    s_cmp_ge_u32 s2, 256
    s_cbranch_scc1 L_{name}_end
    """)
    if "stamp" in dbg:
        a("s_memrealtime s[40:41]\ns_memtime s[42:43]")
    a(f"""
    s_load_dwordx2 s[12:13], s[0:1], 64
    v_lshrrev_b32 v1, 6, v0
    v_and_b32 v0, 63, v0
    s_and_b32 s17, s2, 7
    v_readfirstlane_b32 s16, v1
    s_lshl_b32 s17, s17, 2
    s_lshr_b32 s28, s2, 6
    s_add_u32 s17, s17, s28
    s_bfe_u32 s18, s2, 0x30003
    v_lshlrev_b32 v{V_L16}, 4, v0
    s_mov_b32 s14, {WS_SIZE}
    s_mov_b32 s15, 0x20000
    s_lshl_b32 s19, s17, 18
    s_add_u32 s19, s19, {WS_KV}
    s_lshl_b32 s28, s16, 12
    s_add_u32 s20, s19, s28
    s_mov_b32 s21, s28
    s_lshl_b32 s29, s18, 3
    s_add_u32 s29, s29, s16
    s_lshl_b32 s22, s17, 17
    s_lshl_b32 s30, s29, 11
    s_add_u32 s22, s22, s30
    s_lshl_b32 s23, s29, 16
    s_lshl_b32 s30, s17, 11
    s_add_u32 s23, s23, s30
    s_mov_b32 m0, s21
    """)
    T = V_T
    a(f"""
    v_bfe_u32 v1, v0, 4, 1
    v_lshlrev_b32 v{T}, 11, v1
    v_lshrrev_b32 v1, 5, v0
    v_lshl_add_u32 v{T}, v1, 8, v{T}
    v_lshlrev_b32 v{T+1}, 4, v1
    v_and_b32 v1, 15, v0
    v_lshl_add_u32 v{T}, v1, 4, v{T}
    s_bfe_u32 s28, s16, 0x10001
    s_and_b32 s29, s16, 1
    s_lshr_b32 s30, s16, 2
    s_lshl_b32 s24, s17, 16
    s_add_u32 s24, s24, {WS_KVP}
    s_lshl_b32 s31, s30, 15
    s_add_u32 s24, s24, s31
    s_lshl_b32 s31, s29, 10
    s_add_u32 s24, s24, s31
    s_lshl_b32 s31, s28, 9
    s_add_u32 s24, s24, s31
    s_lshl_b32 s25, s17, 11
    s_add_u32 s25, s25, {WS_ZP}
    s_lshl_b32 s31, s30, 10
    s_add_u32 s25, s25, s31
    s_lshl_b32 s31, s29, 6
    s_add_u32 s25, s25, s31
    s_lshl_b32 s31, s28, 5
    s_add_u32 s25, s25, s31
    s_add_u32 s26, s22, {WS_PQ}
    s_add_u32 s22, s22, {WS_Q}
    s_waitcnt lgkmcnt(0)
    """)

    def dma():
        out = []
        for k in range(4):
            out.append(f"buffer_load_dwordx4 v{V_L16}, s[12:15], s20 offen offset:{k*1024} lds")
        return out

    def dma_adv():
        return f"""s_add_u32 s27, s27, 1
            s_add_u32 s20, s20, {SLOT}
            s_cmp_ge_u32 s27, 8
            s_cselect_b32 s20, 0x40000000, s20
            s_add_u32 s21, s21, {SLOT}
            s_and_b32 s21, s21, {NSLOT*SLOT-1}
            s_mov_b32 m0, s21"""

    a("s_mov_b32 s27, 0")
    for x in dma():
        a(x)
    a(dma_adv())
    a(f"buffer_load_dwordx4 {vr(Q,4)}, v{V_L16}, s[12:15], s22 offen")
    a(f"buffer_load_dwordx4 {vr(Q+4,4)}, v{V_L16}, s[12:15], s22 offen offset:1024")
    for x in dma():
        a(x)
    a(dma_adv())
    for i in range(8):
        a(f"buffer_load_dwordx4 {vr(BL+4*i,4)}, v{T}, s[12:15], s24 offen")
        if i < 7:
            a("s_add_u32 s24, s24, 4096")
    for i in range(8):
        a(f"buffer_load_dwordx4 {vr(BL+32+4*i,4)}, v{T+1}, s[12:15], s25 offen offset:{i*128}")
    a(f"buffer_load_dwordx4 {vr(PQ,4)}, v{V_L16}, s[12:15], s26 offen")
    a(f"buffer_load_dwordx4 {vr(PQ+4,4)}, v{V_L16}, s[12:15], s26 offen offset:1024")
    for x in dma():
        a(x)
    a(dma_adv())
    a(f"""
    v_mov_b32 v{V_A}, v{V_L16}
    v_add_u32 v{V_B}, {SLOT}, v{V_L16}
    s_mov_b32 s33, {SLOT}
    v_lshrrev_b32 v1, 4, v0
    v_lshrrev_b32 v{T+2}, 2, v0
    v_xor_b32 v1, v1, v{T+2}
    v_and_b32 v1, 1, v1
    v_cmp_eq_u32 vcc, 0, v1
    v_mov_b32 v1, 0x3f803f80
    v_cndmask_b32 v{SEL}, 0, v1, vcc
    v_cndmask_b32 v{SEL+1}, 0, v1, vcc
    v_cndmask_b32 v{SEL+2}, 0, v1, vcc
    v_cndmask_b32 v{SEL+3}, 0, v1, vcc
    s_lshl_b32 s28, s16, 11
    s_add_u32 s28, s28, {LDS_B}
    v_add_u32 v{T}, s28, v{V_L16}
    v_add_u32 v{T+1}, {LDS_B}, v{V_L16}
    """)
    for r in range(16):
        a(f"v_mov_b32 v{O+r}, 0")
    for r in range(4):
        a(f"v_mov_b32 v{L+r}, 0")
    if prio:
        a(f"""
        s_cmp_ge_u32 s16, 4
        s_cbranch_scc{0 if prio == 1 else 1} L_{name}_prio
        s_setprio 1
        """)
        a.label(f"L_{name}_prio")
    a(f"s_waitcnt vmcnt({4+18+4})\ns_barrier")
    stamp(a, 1, dbg)

    def rdK(t2, buf):
        base, off = (V_A, t2 * 4096) if t2 < 8 else (V_B, (t2 - 8) * 4096)
        return [(f"ds_read_b128 {vr(KB[buf]+4*c,4)}, v{base} offset:{off+c*1024}", KB[buf] + 4 * c, 4) for c in range(2)]

    def rdV(t1, buf):
        base, off = (V_A, t1 * 4096) if t1 < 8 else (V_B, (t1 - 8) * 4096)
        return [(f"ds_read_b128 {vr(VB[buf]+4*c,4)}, v{base} offset:{off+2048+c*1024}", VB[buf] + 4 * c, 4) for c in range(2)]

    for r in rdK(0, 0) + rdK(1, 1) + rdV(0, 0):
        a.ds(*r)
    a.need((KB[0], 8))
    a(mf32(S[0], KB[0], Q, "0"))
    a(mf32(S[0], KB[0] + 4, Q + 4, S[0]))
    a("s_nop 7\ns_nop 3")
    max16(a, 1, S[0])
    negm_from(a, 1, T + 2)
    a("s_nop 1")
    a(mf32(S[0], KB[0], Q, NEGM))
    a(mf32(S[0], KB[0] + 4, Q + 4, S[0]))
    a("s_nop 7\ns_nop 2")

    if order is None:
        order = "M1 e0 e1 e2 e3 M2 e4 e5 e6 e7 c0 c1 c2 c3 e8 e9 M3 e10 e11 e12 M4 e13 e14 e15 c4 c5 c6 c7 r0 r1 M5 r2 r3 M6"

    def slot(i, hook=None):
        X, Y = S[i % 2], S[(i + 1) % 2]
        Kn, Vc = KB[(i + 1) % 2], VB[i % 2]
        rd = rdK(i + 2, i % 2) + rdV(i + 1, (i + 1) % 2)
        for tok in order.split():
            k = int(tok[1:])
            if tok[0] == "e":
                a(f"v_exp_f32 v{X+k}, v{X+k}")
            elif tok[0] == "c":
                a(f"v_cvt_pk_bf16_f32 v{P+k}, v{X+2*k}, v{X+2*k+1}")
            elif tok[0] == "r":
                a.ds(*rd[k])
            elif tok[0] == "n":
                a(f"s_nop {k}")
            elif tok == "M1":
                a.need((Kn, 4))
                a(mf32(Y, Kn, Q, NEGM))
            elif tok == "M2":
                a.need((Kn + 4, 4))
                a(mf32(Y, Kn + 4, Q + 4, Y))
            elif tok == "M3":
                a.need((Vc, 4))
                a(mf32(O, Vc, P, O))
            elif tok == "M4":
                a(mf16(L, SEL, P, L))
            elif tok == "M5":
                a.need((Vc + 4, 4))
                a(mf32(O, Vc + 4, P + 4, O))
            elif tok == "M6":
                a(mf16(L, SEL, P + 4, L))
            else:
                raise ValueError(tok)

    def bpart1():
        for g in range(2):
            b = BL + 32 * g
            for st in (4, 8, 16):
                for i in range(0, 32, 2 * st):
                    for r in range(4):
                        a(f"v_add_f32 v{b+i+r}, v{b+i+r}, v{b+i+st+r}")
        a.ds(f"ds_write_b128 v{T}, {vr(BL,4)}")
        a.ds(f"ds_write_b128 v{T}, {vr(BL+32,4)} offset:1024")

    def bpart2():
        for w in range(8):
            a.ds(f"ds_read_b128 {vr(BL+4*w,4)}, v{T+1} offset:{w*2048}", BL + 4 * w, 4)
        for w in range(8):
            a.ds(f"ds_read_b128 {vr(BL+32+4*w,4)}, v{T+1} offset:{w*2048+1024}", BL + 32 + 4 * w, 4)

    def bpart3():
        for g in range(2):
            b = BL + 32 * g
            a.need((b, 32))
            for r in range(16):
                a(f"v_add_f32 v{b+r}, v{b+r}, v{b+16+r}")
            for k in range(8):
                a(f"v_cvt_pk_bf16_f32 v{b+16+k}, v{b+2*k}, v{b+2*k+1}")
        a("s_nop 1")
        a(mf32(NUM, BL + 16, PQ, "0"))
        a(mf32(DEN, BL + 48, PQ, "0"))
        a(mf32(NUM, BL + 20, PQ + 4, NUM))
        a(mf32(DEN, BL + 52, PQ + 4, DEN))

    def bpart4():
        a(f"v_add_f32 v{DEN}, {hex(f32bits(1e-6))}, v{DEN}")
        a(f"v_rcp_f32 v{DEN}, v{DEN}")
        a(f"s_add_u32 s28, s23, {WS_OB}")
        for r in range(16):
            a(f"v_mul_f32 v{NUM+r}, v{NUM+r}, v{DEN}")
        for k in range(8):
            a(f"v_cvt_pk_bf16_f32 v{BL+k}, v{NUM+2*k}, v{NUM+2*k+1}")
        a(f"buffer_store_dwordx4 {vr(BL,4)}, v{V_L16}, s[12:15], s28 offen")
        a(f"buffer_store_dwordx4 {vr(BL+4,4)}, v{V_L16}, s[12:15], s28 offen offset:1024")

    def stage(peel):
        for i in range(8):
            if i == 6:
                a("s_waitcnt vmcnt(4)")
                if peel:
                    bpart1()
                    a.lds_drain()
                a("s_barrier")
                for x in dma():
                    a(x)
                a(dma_adv())
                if peel:
                    bpart2()
            if i == 7 and peel:
                bpart3()
            slot(i)
        if peel:
            bpart4()
        a(f"""
        s_add_u32 s33, s33, {SLOT}
        s_and_b32 s33, s33, {NSLOT*SLOT-1}
        v_mov_b32 v{V_A}, v{V_B}
        v_add_u32 v{V_B}, s33, v{V_L16}
        """)

    stage(True)
    q0 = list(a.ldsq)
    a("s_mov_b32 s34, 7")
    a.label(f"L_{name}_loop")
    stage(False)
    assert a.ldsq == q0, (a.ldsq, q0)
    a(f"""
    s_sub_u32 s34, s34, 1
    s_cmp_lg_u32 s34, 0
    s_cbranch_scc1 L_{name}_loop
    """)
    a.ldsq = []
    a("s_waitcnt vmcnt(0) lgkmcnt(0)")
    stamp(a, 2, dbg)
    a("s_nop 7\ns_nop 3")
    a(f"v_add_f32 v1, |v{O}|, |v{O+1}|")
    for r in range(2, 16):
        a(f"v_add_f32 v1, v1, |v{O+r}|")
    a(f"""
    v_mov_b32 v{T}, {hex(f32bits(2.0**60))}
    v_mov_b32 v{T+1}, {hex(f32bits(2.0**126))}
    v_cmp_lt_f32 vcc, v{L}, v{T}
    v_cmp_lt_f32 s[28:29], v1, v{T+1}
    s_and_b64 vcc, vcc, s[28:29]
    s_cmp_eq_u64 vcc, -1
    s_cbranch_scc0 L_{name}_slow
    """)
    a.label(f"L_{name}_fin")
    a(f"v_rcp_f32 v1, v{L}")
    a(f"s_add_u32 s28, s23, {WS_OA}")
    for r in range(16):
        a(f"v_mul_f32 v{O+r}, v{O+r}, v1")
    for k in range(8):
        a(f"v_cvt_pk_bf16_f32 v{P+k}, v{O+2*k}, v{O+2*k+1}")
    a(f"buffer_store_dwordx4 {vr(P,4)}, v{V_L16}, s[12:15], s28 offen")
    a(f"buffer_store_dwordx4 {vr(P+4,4)}, v{V_L16}, s[12:15], s28 offen offset:1024")
    if "stamp" in dbg:
        stamp_out(a, int(dbg.split("stamp")[1][0]), nw_shift=3)
    a.label(f"L_{name}_end")
    a("s_endpgm")

    a.label(f"L_{name}_slow")
    a(f"""
    s_waitcnt vmcnt(0)
    s_mov_b32 s28, s19
    s_mov_b32 s29, 64
    v_mov_b32 v{T}, 0xff800000
    """)
    a.label(f"L_{name}_slow1")
    a(f"""
    buffer_load_dwordx4 {vr(KB[0],4)}, v{V_L16}, s[12:15], s28 offen
    buffer_load_dwordx4 {vr(KB[0]+4,4)}, v{V_L16}, s[12:15], s28 offen offset:1024
    s_waitcnt vmcnt(0)
    """)
    a(mf32(S[0], KB[0], Q, "0"))
    a(mf32(S[0], KB[0] + 4, Q + 4, S[0]))
    a("s_nop 7\ns_nop 3")
    max16(a, 1, S[0], T)
    a(f"""
    v_mov_b32 v{T}, v1
    s_add_u32 s28, s28, 4096
    s_sub_u32 s29, s29, 1
    s_cmp_lg_u32 s29, 0
    s_cbranch_scc1 L_{name}_slow1
    """)
    negm_from(a, 1, T + 2)
    for r in range(16):
        a(f"v_mov_b32 v{O+r}, 0")
    for r in range(4):
        a(f"v_mov_b32 v{L+r}, 0")
    a("s_mov_b32 s28, s19\ns_mov_b32 s29, 64")
    a.label(f"L_{name}_slow2")
    a(f"""
    buffer_load_dwordx4 {vr(KB[0],4)}, v{V_L16}, s[12:15], s28 offen
    buffer_load_dwordx4 {vr(KB[0]+4,4)}, v{V_L16}, s[12:15], s28 offen offset:1024
    buffer_load_dwordx4 {vr(VB[0],4)}, v{V_L16}, s[12:15], s28 offen offset:2048
    buffer_load_dwordx4 {vr(VB[0]+4,4)}, v{V_L16}, s[12:15], s28 offen offset:3072
    s_waitcnt vmcnt(0)
    """)
    a(mf32(S[0], KB[0], Q, NEGM))
    a(mf32(S[0], KB[0] + 4, Q + 4, S[0]))
    a("s_nop 7\ns_nop 3")
    for k in range(16):
        a(f"v_exp_f32 v{S[0]+k}, v{S[0]+k}")
    a("s_nop 0")
    for k in range(8):
        a(f"v_cvt_pk_bf16_f32 v{P+k}, v{S[0]+2*k}, v{S[0]+2*k+1}")
    a("s_nop 1")
    a(mf32(O, VB[0], P, O))
    a(mf16(L, SEL, P, L))
    a(mf32(O, VB[0] + 4, P + 4, O))
    a(mf16(L, SEL, P + 4, L))
    a(f"""
    s_add_u32 s28, s28, 4096
    s_sub_u32 s29, s29, 1
    s_cmp_lg_u32 s29, 0
    s_cbranch_scc1 L_{name}_slow2
    s_nop 7
    s_nop 3
    s_branch L_{name}_fin
    """)
    return a.text(), kernel_desc(name, NV, 240), LDS_TOTAL
```

```python
import math
from asmlib import *

MB = 1 << 20
WS_Q = 0
WS_KV = 4 * MB
WS_PQ = 12 * MB
WS_OA = 16 * MB
WS_OB = 20 * MB
WS_KVP = 24 * MB
WS_ZP = 26 * MB
WS_SIZE = 28 * MB

LOG2E = math.log2(math.e)
QSCALE = 32 ** -0.5 * LOG2E

V_OFFX = 2
V_OFFW = 6
V_XB = 10
V_XC = 12
V_WB = 14
V_WC = 16
V_T = 18
ACC = 32
NACC_OFF = 224
NV = 224 + 112
NX, NW = 3, 5
XSZ, WSZ = 32768, 12288
LDS_W = 0
LDS_X = NW * WSZ
LDS_TOTAL = LDS_X + NX * XSZ


def acc(rt, ct):
    return ACC + (rt * 6 + ct) * 4


def ar(b, n):
    return f"a[{b}:{b+n-1}]"


def xf(b, rt):
    return b * 56 + rt * 4


def wf(b, ct):
    return b * 56 + 32 + ct * 4


def stamp(a, k, dbg):
    if "stamp" in dbg:
        a(f"s_memtime s[{42+2*k}:{43+2*k}]")


def stamp_out(a, slot, wave_sgpr=16, nw_shift=2):
    a(f"""
    s_waitcnt vmcnt(0)
    s_memtime s[48:49]
    s_memrealtime s[50:51]
    s_waitcnt lgkmcnt(0)
    s_mov_b32 s14, {64*MB}
    v_mov_b32 v2, s40
    v_mov_b32 v3, s42
    v_mov_b32 v4, s44
    v_mov_b32 v5, s46
    v_mov_b32 v6, s48
    v_mov_b32 v7, s50
    v_mov_b32 v8, s60
    v_mov_b32 v9, s61
    s_lshl_b32 s28, s2, {nw_shift}
    s_add_u32 s28, s28, s{wave_sgpr}
    s_lshl_b32 s28, s28, 5
    s_add_u32 s28, s28, {32*MB + slot*MB}
    v_mov_b32 v1, 0
    s_mov_b32 exec_hi, 0
    s_mov_b32 exec_lo, 1
    buffer_store_dwordx4 v[2:5], v1, s[12:15], s28 offen
    buffer_store_dwordx4 v[6:9], v1, s[12:15], s28 offen offset:16
    """)


def qkv_kernel(name, dbg="", rotmask=15, BODY=4, PEEL=4, PH=2, PFD=2, xrot=2):
    a = Asm()
    a.raw(kernel_header(name))
    a(f"""
    s_cmp_ge_u32 s2, 256
    s_cbranch_scc1 L_{name}_end
    """)
    if "stamp" in dbg:
        a("s_memrealtime s[40:41]\ns_memtime s[42:43]")
    a(f"""
    s_load_dwordx4 s[20:23], s[0:1], 0
    s_load_dwordx4 s[24:27], s[0:1], 24
    s_load_dwordx2 s[12:13], s[0:1], 64
    v_lshrrev_b32 v1, 6, v0
    v_and_b32 v0, 63, v0
    s_and_b32 s28, s2, 7
    s_lshr_b32 s29, s2, 3
    v_readfirstlane_b32 s16, v1
    s_lshr_b32 s19, s28, 2
    s_bfe_u32 s17, s28, 0x10001
    s_lshl_b32 s17, s17, 2
    s_and_b32 s30, s29, 3
    s_add_u32 s17, s17, s30
    s_and_b32 s18, s28, 1
    s_lshl_b32 s18, s18, 3
    s_lshr_b32 s30, s29, 2
    s_add_u32 s18, s18, s30
    """)
    T = V_T
    a(f"""
    v_lshrrev_b32 v1, 3, v0
    s_lshl_b32 s28, s17, 8
    s_lshl_b32 s29, s16, 6
    s_add_u32 s28, s28, s29
    v_add_u32 v1, s28, v1
    v_lshlrev_b32 v1, 11, v1
    v_lshrrev_b32 v{T}, 4, v0
    v_and_b32 v{T+1}, 7, v0
    v_xor_b32 v{T+2}, v{T}, v{T+1}
    v_xor_b32 v{T+3}, 4, v{T+2}
    v_lshl_add_u32 v{V_OFFX}, v{T+2}, 4, v1
    v_lshl_add_u32 v{V_OFFX+1}, v{T+3}, 4, v1
    v_add_u32 v{V_OFFX+2}, {2*(16384-1024)}, v{V_OFFX}
    v_add_u32 v{V_OFFX+3}, {3*(16384-1024)}, v{V_OFFX+1}
    v_add_u32 v{V_OFFX+1}, {16384-1024}, v{V_OFFX+1}
    """)
    a(f"""
    v_lshrrev_b32 v1, 5, v0
    v_lshlrev_b32 v1, 2, v1
    v_bfe_u32 v{T}, v0, 2, 2
    v_add_u32 v1, v1, v{T}
    v_mul_u32_u24 v1, 6144, v1
    v_bfe_u32 v{T}, v0, 4, 1
    v_lshl_add_u32 v1, v{T}, 6, v1
    v_and_b32 v{T}, 3, v0
    v_lshlrev_b32 v{T}, 4, v{T}
    s_lshl_b32 s28, s18, 7
    s_mul_i32 s29, s16, 3
    """)
    for jj in range(3):
        a(f"""
        s_add_u32 s30, s29, {jj}
        s_lshr_b32 s31, s30, 2
        s_and_b32 s30, s30, 3
        s_and_b32 s32, s30, 1
        s_lshl_b32 s32, s32, 5
        s_mul_i32 s30, s30, {8*6144}
        s_lshl_b32 s31, s31, 11
        s_add_u32 s30, s30, s31
        s_add_u32 s30, s30, s28
        s_sub_u32 s30, s30, {jj*1024}
        v_xor_b32 v{T+1}, s32, v{T}
        v_add3_u32 v{V_OFFW+jj}, s30, v1, v{T+1}
        """)
    a(f"""
    v_and_b32 v1, 15, v0
    s_lshr_b32 s28, s16, 1
    s_lshl_b32 s28, s28, 14
    s_add_u32 s28, s28, {LDS_X}
    v_lshlrev_b32 v{T}, 7, v1
    v_add_u32 v{T}, s28, v{T}
    v_bfe_u32 v1, v0, 1, 3
    v_lshrrev_b32 v{T+1}, 4, v0
    v_xor_b32 v1, v1, v{T+1}
    v_lshl_add_u32 v{V_XB}, v1, 4, v{T}
    v_xor_b32 v1, 4, v1
    v_lshl_add_u32 v{V_XB+1}, v1, 4, v{T}
    s_and_b32 s28, s16, 1
    s_lshl_b32 s28, s28, 8
    s_add_u32 s28, s28, {LDS_W}
    v_lshlrev_b32 v{T}, 10, v{T+1}
    v_add_u32 v{T}, s28, v{T}
    v_bfe_u32 v1, v0, 2, 2
    v_lshl_add_u32 v{T}, v1, 6, v{T}
    v_and_b32 v1, 3, v0
    v_lshl_add_u32 v{T}, v1, 3, v{T}
    v_bfe_u32 v1, v0, 4, 1
    v_lshl_add_u32 v{V_WB}, v1, 5, v{T}
    v_xor_b32 v{V_WB+1}, 32, v{V_WB}
    s_lshl_b32 s30, s16, 13
    s_add_u32 s30, s30, {LDS_X}
    s_mul_i32 s31, s16, 3072
    s_add_u32 s31, s31, {LDS_W}
    s_waitcnt lgkmcnt(0)
    s_cmp_eq_u32 s19, 0
    s_cselect_b32 s4, s20, s24
    s_cselect_b32 s5, s21, s25
    s_cselect_b32 s8, s22, s26
    s_cselect_b32 s9, s23, s27
    s_mov_b32 s6, {4*MB}
    s_mov_b32 s7, 0x20000
    s_mov_b32 s10, {6*MB}
    s_mov_b32 s11, 0x20000
    s_mov_b32 s14, {WS_SIZE}
    s_mov_b32 s15, 0x20000
    s_mov_b32 s22, s30
    s_mov_b32 s23, s31
    s_add_u32 s33, s17, s18
    s_and_b32 s33, s33, {rotmask}
    s_and_b32 s28, s2, 7
    s_mul_i32 s28, s28, {xrot}
    s_add_u32 s33, s33, s28
    s_and_b32 s33, s33, 15
    s_lshl_b32 s20, s33, 7
    s_mul_i32 s21, s33, {64*6144}
    s_mov_b32 s34, s20
    s_add_u32 s38, s20, 65536
    s_mov_b32 s35, s21
    s_mov_b32 s36, 16
    s_mov_b32 s37, 32
    s_mov_b32 s24, 0
    s_mov_b32 s25, 0
    s_mov_b32 s26, 0
    s_mov_b32 s27, 0
    """)
    if PH:
        LX = {1: 0, 2: 1, 4: 2}[PH]
        a(f"""
        s_lshr_b32 s28, s2, 3
        s_lshl_b32 s28, s28, 2
        s_add_u32 s28, s28, s16
        s_lshl_b32 s29, s28, 3
        s_bfe_u32 s30, s2, 0x10001
        s_lshl_b32 s30, s30, 10
        s_add_u32 s29, s29, s30
        v_lshrrev_b32 v1, {LX}, v0
        v_add_u32 v1, s29, v1
        v_lshlrev_b32 v1, 11, v1
        v_and_b32 v{T}, {PH-1}, v0
        v_lshl_add_u32 v20, v{T}, 7, v1
        v_mov_b32 v1, 0x40000000
        v_cmp_gt_u32 vcc, {8*PH}, v0
        v_cndmask_b32 v20, v1, v20, vcc
        s_mul_i32 s29, s28, {PH//2}
        v_lshrrev_b32 v{T}, 3, v0
        v_mul_u32_u24 v{T+1}, 43, v{T}
        v_lshrrev_b32 v{T+1}, 7, v{T+1}
        v_mul_u32_u24 v22, 3, v{T+1}
        v_sub_u32 v{T}, v{T}, v22
        v_add_u32 v{T+1}, s29, v{T+1}
        v_mul_u32_u24 v21, 6144, v{T+1}
        v_lshl_add_u32 v21, v{T}, 11, v21
        v_and_b32 v{T}, 7, v0
        v_lshl_add_u32 v21, v{T}, 7, v21
        s_and_b32 s30, s2, 1
        s_lshl_b32 s30, s30, 10
        v_add_u32 v21, s30, v21
        v_cmp_gt_u32 vcc, {12*PH}, v0
        v_cndmask_b32 v21, v1, v21, vcc
        s_add_u32 s52, s20, {PH*128}
        s_and_b32 s52, s52, 2047
        s_add_u32 s53, s21, {PH*64*6144}
        s_cmp_ge_u32 s53, {6*MB}
        s_cselect_b32 s53, 0, s53
        s_mov_b32 s54, {16//PH - 1}
        s_mov_b32 s55, s52
        s_mov_b32 s56, s53
        """)

    def pref():
        return ["buffer_load_dword v31, v20, s[4:7], s55 offen",
                "buffer_load_dword v31, v21, s[8:11], s56 offen",
                f"""s_add_u32 s52, s52, {PH*128}
                s_and_b32 s52, s52, 2047
                s_add_u32 s53, s53, {PH*64*6144}
                s_cmp_ge_u32 s53, {6*MB}
                s_cselect_b32 s53, 0, s53
                s_sub_u32 s54, s54, 1
                s_cmp_gt_i32 s54, 0
                s_cselect_b32 s55, s52, 0x40000000
                s_cselect_b32 s56, s53, 0x40000000"""]

    def dmaX():
        out = ["s_add_u32 m0, s22, s24"]
        for jj in range(4):
            out.append(f"buffer_load_dwordx4 v{V_OFFX+jj}, s[4:7], s34 offen offset:{jj*1024} lds")
        out.append("s_add_u32 m0, m0, 4096")
        for jj in range(4):
            out.append(f"buffer_load_dwordx4 v{V_OFFX+jj}, s[4:7], s38 offen offset:{jj*1024} lds")
        out.append(f"""s_add_u32 s20, s20, 128
            s_and_b32 s20, s20, 2047
            s_sub_u32 s36, s36, 1
            s_cmp_gt_i32 s36, 0
            s_cselect_b32 s34, s20, 0x40000000
            s_add_u32 s38, s34, 65536
            s_add_u32 s24, s24, {XSZ}
            s_cmp_ge_u32 s24, {NX*XSZ}
            s_cselect_b32 s24, 0, s24""")
        return out

    def dmaW():
        out = ["s_add_u32 m0, s23, s25"]
        for jj in range(3):
            out.append(f"buffer_load_dwordx4 v{V_OFFW+jj}, s[8:11], s35 offen offset:{jj*1024} lds")
        out.append(f"""s_add_u32 s21, s21, {32*6144}
            s_cmp_ge_u32 s21, {6*MB}
            s_cselect_b32 s21, 0, s21
            s_sub_u32 s37, s37, 1
            s_cmp_gt_i32 s37, 0
            s_cselect_b32 s35, s21, 0x40000000
            s_add_u32 s25, s25, {WSZ}
            s_cmp_ge_u32 s25, {NW*WSZ}
            s_cselect_b32 s25, 0, s25""")
        return out

    def emit_item(x):
        a(x)
        if x.startswith("s_add_u32 m0"):
            a("s_nop 0")

    seq = []
    queue = []

    def group_items(kind, idx):
        return [(x, kind, idx) for x in (dmaX() if kind == "X" else dmaW() if kind == "W" else pref())]

    def vm_for(needed):
        last = max(i for i, s in enumerate(seq) if s in needed)
        return len(seq) - 1 - last

    pro = [("X", i, 2 * i - 1) for i in range(NX)] + [("W", t, t - 1) for t in range(NW)]
    pro.sort(key=lambda z: (z[2], z[0] != "X"))
    pro = [(k, i) for k, i, _ in pro]
    NFIRST = 3
    for kind, idx in pro[:NFIRST]:
        for x, k, i in group_items(kind, idx):
            emit_item(x)
            if x.startswith("buffer_load"):
                seq.append((k, i))
    items = []
    if PH:
        for k in range(PFD):
            for x, kk, i in group_items("P", k):
                emit_item(x)
                if x.startswith("buffer_load"):
                    seq.append((kk, i))
    for kind, idx in pro[NFIRST:]:
        items += group_items(kind, idx)

    a("s_cmp_eq_u32 s19, 0\ns_cselect_b32 s28, 0, 1.0")
    for rt in range(8):
        for ct in range(6):
            for r in range(4):
                a(f"v_mov_b32 v{acc(rt,ct)+r}, " + ("s28" if ct < 4 else "0"))
    a(f"""
    v_mov_b32 v{V_XC}, v{V_XB}
    v_mov_b32 v{V_XC+1}, v{V_XB+1}
    v_mov_b32 v{V_WC}, v{V_WB}
    v_mov_b32 v{V_WC+1}, v{V_WB+1}
    """)
    a(f"s_waitcnt vmcnt({vm_for({('X',0),('W',0)})})\ns_barrier")
    stamp(a, 1, dbg)
    if "stamp" in dbg:
        a("s_waitcnt lgkmcnt(0)")

    AOFF = 1000

    def reads(t):
        b = t % 2
        u = t % 2
        X = [(f"ds_read_b128 {ar(xf(b,rt),4)}, v{V_XC+u} offset:{rt*2048}", AOFF + xf(b, rt), 4) for rt in range(8)]
        W = []
        for ct in range(6):
            seg, nh = ct // 2, ct % 2
            for tt in range(2):
                W.append((f"ds_read_b64_tr_b16 {ar(wf(b,ct)+2*tt,2)}, v{V_WC+nh} offset:{seg*4096+tt*512}", AOFF + wf(b, ct) + 2 * tt, 2))
        return [X[0]] + W + X[1:]

    def advance_read(t):
        out = [f"""s_add_u32 s27, s27, {WSZ}
            s_cmp_ge_u32 s27, {NW*WSZ}
            s_cselect_b32 s27, 0, s27
            v_add_u32 v{V_WC}, s27, v{V_WB}
            v_add_u32 v{V_WC+1}, s27, v{V_WB+1}"""]
        if t % 2 == 0:
            out.append(f"""s_add_u32 s26, s26, {XSZ}
            s_cmp_ge_u32 s26, {NX*XSZ}
            s_cselect_b32 s26, 0, s26
            v_add_u32 v{V_XC}, s26, v{V_XB}
            v_add_u32 v{V_XC+1}, s26, v{V_XB+1}""")
        return out

    for r in reads(0):
        a.ds(*r)

    def step(t, prob, vmtag, record):
        nonlocal items
        b = t % 2
        rd = reads(t + 1)
        m = 0
        BAR = 2
        for rt in range(8):
            for ct in range(6):
                a.need((AOFF + xf(b, rt), 4), (AOFF + wf(b, ct), 4))
                seg = ct // 2
                wfirst = (seg == 0) or (seg == 1 and prob == "A")
                A_, B_ = (wf(b, ct), xf(b, rt)) if wfirst else (xf(b, rt), wf(b, ct))
                if "nomfma" not in dbg:
                    a(f"v_mfma_f32_16x16x32_bf16 {vr(acc(rt,ct),4)}, {ar(A_,4)}, {ar(B_,4)}, {vr(acc(rt,ct),4)}")
                if m == 0:
                    for x in advance_read(t + 1):
                        a(x)
                if m == BAR:
                    a.lds_drain()
                    a(f"s_waitcnt vmcnt({vmtag})\ns_barrier")
                    items += group_items("W", t + NW)
                    if t % 2 == 1:
                        items += group_items("X", (t - 1) // 2 + NX)
                    if PH and t % (2 * PH) == 0:
                        items += group_items("P", 100 + t)
                if m > BAR:
                    k = m - BAR - 1
                    if k % 2 == 0 and rd:
                        a.ds(*rd.pop(0))
                    elif items:
                        while items:
                            x, kk, ii = items.pop(0)
                            emit_item(x)
                            if x.startswith("buffer_load"):
                                if record:
                                    seq.append((kk, ii))
                                break
                        while items and not items[0][0].startswith("buffer_load") and not items[0][0].startswith("s_add_u32 m0"):
                            emit_item(items.pop(0)[0])
                m += 1
        assert not rd

    def needed(t):
        nd = {("W", t + 1)}
        if t % 2 == 1:
            nd.add(("X", (t + 1) // 2))
        return nd

    save = (list(a.lines), list(a.ldsq), list(items), list(seq))
    vms = []
    for t in range(32):
        vms.append(vm_for(needed(t)))
        step(t, "A", 0, True)
        if t >= PEEL - 1:
            assert not items, (t, len(items))
    a.lines, a.ldsq, items, seq = save
    state_q = list(a.ldsq)
    loopvm = [min(vms[t] for t in range(PEEL, 32) if (t - PEEL) % BODY == k) for k in range(BODY)]
    assert (32 - PEEL) % BODY == 0 and BODY % 2 == 0 and PEEL % 2 == 0 and (not PH or (BODY % (2*PH) == 0 and PEEL % (2*PH) == 0))

    a("s_cmp_lg_u32 s19, 0")
    a(f"s_cbranch_scc1 L_{name}_B")
    items0 = list(items)
    for prob in ("A", "B"):
        if prob == "B":
            a.label(f"L_{name}_B")
        items = list(items0)
        a.ldsq = list(state_q)
        for t in range(PEEL):
            step(t, prob, vms[t], False)
        a(f"s_mov_b32 s39, {(32-PEEL)//BODY}")
        a.label(f"L_{name}_loop{prob}")
        for k in range(BODY):
            step(PEEL + k, prob, loopvm[k], False)
        a(f"""
        s_sub_u32 s39, s39, 1
        s_cmp_lg_u32 s39, 0
        s_cbranch_scc1 L_{name}_loop{prob}
        """)
        a.ldsq = []
        a("s_waitcnt vmcnt(0) lgkmcnt(0)\ns_nop 7")
        stamp(a, 2, dbg)
        epilogue(a, prob)
        if prob == "A":
            a(f"s_branch L_{name}_fin")
    a.label(f"L_{name}_fin")
    if "stamp" in dbg:
        stamp_out(a, int(dbg.split("stamp")[1][0]))
    a.label(f"L_{name}_end")
    a("s_endpgm")
    return a.text(), kernel_desc(name, NV, NACC_OFF), LDS_TOTAL


def epilogue(a, prob):
    a(f"""
    s_and_b32 s28, s16, 1
    s_lshl_b32 s29, s18, 1
    s_add_u32 s28, s28, s29
    s_lshr_b32 s29, s16, 1
    s_lshl_b32 s29, s29, 2
    s_lshl_b32 s30, s17, 3
    s_add_u32 s29, s29, s30
    v_lshrrev_b32 v1, 4, v0
    v_lshlrev_b32 v1, 9, v1
    v_and_b32 v2, 15, v0
    v_lshl_add_u32 v4, v2, 4, v1
    v_and_b32 v2, 7, v0
    v_lshl_add_u32 v5, v2, 4, v1
    v_bfe_u32 v2, v0, 3, 1
    v_lshl_add_u32 v5, v2, 8, v5
    """)
    TB = 8
    n = 0

    def pack(dst, t0, t1):
        a(f"v_cvt_pk_bf16_f32 v{dst}, v{t0}, v{t0+1}")
        a(f"v_cvt_pk_bf16_f32 v{dst+1}, v{t0+2}, v{t0+3}")
        a(f"v_cvt_pk_bf16_f32 v{dst+2}, v{t1}, v{t1+1}")
        a(f"v_cvt_pk_bf16_f32 v{dst+3}, v{t1+2}, v{t1+3}")

    if prob == "A":
        a(f"""
        s_lshl_b32 s30, s28, 17
        s_lshl_b32 s31, s29, 11
        s_add_u32 s30, s30, s31
        s_add_u32 s30, s30, {WS_Q}
        s_add_u32 s31, s30, 4096
        s_lshl_b32 s32, s28, 18
        s_lshl_b32 s33, s29, 12
        s_add_u32 s32, s32, s33
        s_add_u32 s32, s32, {WS_KV}
        s_add_u32 s33, s32, 4096
        s_add_u32 s34, s32, 8192
        s_add_u32 s35, s32, 12288
        v_mov_b32 v1, {hex(f32bits(QSCALE))}
        """)
        for rt in range(8):
            tl, half = rt // 2, rt % 2
            for ct in range(2):
                for r in range(4):
                    a(f"v_mul_f32 v{acc(rt,ct)+r}, v1, v{acc(rt,ct)+r}")
            d = TB + (n % 6) * 4; n += 1
            pack(d, acc(rt, 0), acc(rt, 1))
            a(f"buffer_store_dwordx4 {vr(d,4)}, v4, s[12:15], s{30+tl//2} offen offset:{(tl%2)*2048+half*256}")
            d = TB + (n % 6) * 4; n += 1
            pack(d, acc(rt, 2), acc(rt, 3))
            a(f"buffer_store_dwordx4 {vr(d,4)}, v5, s[12:15], s{32+tl} offen offset:{half*128}")
            if half == 1:
                for dt in range(2):
                    d = TB + (n % 6) * 4; n += 1
                    pack(d, acc(rt - 1, 4 + dt), acc(rt, 4 + dt))
                    a(f"buffer_store_dwordx4 {vr(d,4)}, v4, s[12:15], s{32+tl} offen offset:{2048+dt*256}")
    else:
        a(f"""
        s_lshl_b32 s30, s28, 17
        s_lshl_b32 s31, s29, 11
        s_add_u32 s30, s30, s31
        s_add_u32 s30, s30, {WS_PQ}
        s_add_u32 s31, s30, 4096
        s_lshr_b32 s33, s29, 2
        s_lshl_b32 s32, s28, 4
        s_add_u32 s33, s33, s32
        s_lshl_b32 s32, s33, 12
        s_add_u32 s32, s32, {WS_KVP}
        s_lshl_b32 s33, s33, 7
        s_add_u32 s33, s33, {WS_ZP}
        v_mov_b32 v1, {hex(f32bits(LOG2E))}
        v_mov_b32 v2, {hex(f32bits(-LOG2E))}
        v_mov_b32 v3, {hex(f32bits(1e-6))}
        v_mov_b32 v28, 0x3f803f80
        v_mov_b32 v29, 0x3f803f80
        v_mov_b32 v30, 0x3f803f80
        v_mov_b32 v31, 0x3f803f80
        """)

        def phi(base):
            for r in range(4):
                a(f"v_fma_f32 v{24+r}, v{base+r}, v1, v2")
            for r in range(4):
                a(f"v_exp_f32 v{24+r}, v{24+r} clamp")
            for r in range(4):
                a(f"v_max_f32 v{base+r}, v{base+r}, v{24+r}")
            for r in range(4):
                a(f"v_add_f32 v{base+r}, v3, v{base+r}")
        for pr in range(4):
            r0, r1 = 2 * pr, 2 * pr + 1
            for rt in (r0, r1):
                for ct in (2, 3):
                    phi(acc(rt, ct))
            for dt in range(2):
                pack(TB + 4 * dt, acc(r0, 2 + dt), acc(r1, 2 + dt))
                pack(TB + 8 + 4 * dt, acc(r0, 4 + dt), acc(r1, 4 + dt))
            a("s_nop 1")
            for de in range(2):
                for dd in range(2):
                    dst = ar((de * 2 + dd) * 4, 4)
                    a(f"v_mfma_f32_16x16x32_bf16 {dst}, {vr(TB+4*dd,4)}, {vr(TB+8+4*de,4)}, " + ("0" if pr == 0 else dst))
            for dd in range(2):
                dst = ar(16 + dd * 4, 4)
                a(f"v_mfma_f32_16x16x32_bf16 {dst}, v[28:31], {vr(TB+4*dd,4)}, " + ("0" if pr == 0 else dst))
            for rt in (r0, r1):
                for ct in (0, 1):
                    phi(acc(rt, ct))
                d = acc(rt, 2)
                pack(d, acc(rt, 0), acc(rt, 1))
                a(f"buffer_store_dwordx4 {vr(d,4)}, v4, s[12:15], s{30+pr//2} offen offset:{(pr%2)*2048+(rt%2)*256}")
        a("v_lshlrev_b32 v6, 4, v0\nv_lshlrev_b32 v7, 2, v0")
        for k in range(4):
            a(f"buffer_store_dwordx4 {ar(4*k,4)}, v6, s[12:15], s32 offen offset:{k*1024}")
        a(f"""
        s_mov_b32 exec_hi, 0
        s_mov_b32 exec_lo, 0xffff
        buffer_store_dword a16, v7, s[12:15], s33 offen
        buffer_store_dword a20, v7, s[12:15], s33 offen offset:64
        s_mov_b64 exec, -1
        """)
```

```python
from asmlib import *
from gemm2 import MB, WS_OA, WS_OB, WS_SIZE, stamp, stamp_out

R = 10
SLOT = 16384
LDS_TOTAL = R * SLOT

V_L16 = 2
V_OW = 3
V_RA = 5
V_RB = 11
V_T = 14
FR = 20
ACC = 84
NV = 148


def acc(mt, nt):
    return ACC + (mt * 4 + nt) * 4


def fa(b, nt):
    return FR + b * 32 + nt * 4


def fb(b, mt):
    return FR + b * 32 + 16 + mt * 4


def oproj_kernel(name, dbg="", BAR=2, NFIRST=2):
    a = Asm()
    a.raw(kernel_header(name))
    a(f"""
    s_cmp_ge_u32 s2, 256
    s_cbranch_scc1 L_{name}_end
    """)
    if "stamp" in dbg:
        a("s_memrealtime s[40:41]\ns_memtime s[42:43]")
    T = V_T
    a(f"""
    s_load_dwordx2 s[20:21], s[0:1], 16
    s_load_dwordx2 s[22:23], s[0:1], 40
    s_load_dwordx2 s[4:5], s[0:1], 48
    s_load_dwordx2 s[12:13], s[0:1], 64
    v_lshrrev_b32 v1, 6, v0
    v_and_b32 v0, 63, v0
    s_bfe_u32 s19, s2, 0x10002
    v_readfirstlane_b32 s16, v1
    s_and_b32 s17, s2, 3
    s_lshl_b32 s17, s17, 2
    s_bfe_u32 s28, s2, 0x20003
    s_add_u32 s17, s17, s28
    s_lshr_b32 s18, s2, 5
    v_lshlrev_b32 v{V_L16}, 4, v0
    s_mov_b32 s14, {WS_SIZE}
    s_mov_b32 s15, 0x20000
    s_mov_b32 s10, {2*MB}
    s_mov_b32 s11, 0x20000
    s_mov_b32 s6, {8*MB}
    s_mov_b32 s7, 0x20000
    """)
    a(f"""
    s_lshl_b32 s24, s17, 2
    s_add_u32 s24, s24, s16
    s_lshl_b32 s24, s24, 16
    s_lshl_b32 s28, s19, 22
    s_add_u32 s24, s24, s28
    s_add_u32 s24, s24, {WS_OA - 2048}
    s_lshr_b32 s28, s16, 1
    s_lshl_b32 s28, s28, 4
    s_and_b32 s29, s16, 1
    s_lshl_b32 s30, s29, 2
    s_add_u32 s28, s28, s30
    s_lshl_b32 s28, s28, 11
    s_lshl_b32 s30, s18, 8
    s_add_u32 s28, s28, s30
    s_lshl_b32 s29, s29, 1
    v_bfe_u32 v1, v0, 2, 2
    v_lshlrev_b32 v1, 11, v1
    v_lshrrev_b32 v{T}, 4, v0
    v_lshl_add_u32 v1, v{T}, 6, v1
    v_and_b32 v{T}, 3, v0
    v_xor_b32 v{T}, s29, v{T}
    v_lshl_add_u32 v1, v{T}, 4, v1
    v_add_u32 v{V_OW}, s28, v1
    v_add_u32 v{V_OW+1}, {8*2048-1024}, v{V_OW}
    s_mov_b32 s25, 0
    s_lshl_b32 s26, s16, 12
    s_mov_b32 m0, s26
    s_waitcnt lgkmcnt(0)
    s_cmp_eq_u32 s19, 0
    s_cselect_b32 s8, s20, s22
    s_cselect_b32 s9, s21, s23
    """)

    def dma(t):
        out = [f"buffer_load_dwordx4 v{V_OW}, s[8:11], s25 offen lds",
               f"buffer_load_dwordx4 v{V_OW+1}, s[8:11], s25 offen offset:1024 lds",
               f"buffer_load_dwordx4 v{V_L16}, s[12:15], s24 offen offset:2048 lds",
               f"buffer_load_dwordx4 v{V_L16}, s[12:15], s24 offen offset:3072 lds"]
        nxt = ((t + 1) % R) * SLOT
        out.append(f"s_add_u32 s25, s25, 65536\ns_add_u32 s24, s24, 2048\ns_add_u32 m0, s26, {nxt}")
        return out

    seq = []
    for t in range(NFIRST):
        for x in dma(t):
            a(x)
        a("s_nop 0")
        seq += [t] * 4
    a(f"""
    v_lshrrev_b32 v1, 4, v0
    v_lshlrev_b32 v{T}, 12, v1
    v_bfe_u32 v{T+1}, v0, 2, 2
    v_lshl_add_u32 v{T}, v{T+1}, 6, v{T}
    v_and_b32 v{T+1}, 3, v0
    v_lshl_add_u32 v{T}, v{T+1}, 3, v{T}
    v_and_b32 v1, 1, v1
    v_lshl_add_u32 v{T}, v1, 5, v{T}
    s_and_b32 s28, s16, 1
    s_lshl_b32 s28, s28, 9
    v_add_u32 v{V_RA}, s28, v{T}
    v_xor_b32 v{V_RA+1}, 32, v{V_RA}
    v_add_u32 v{V_RA+2}, 0x10000, v{V_RA}
    v_add_u32 v{V_RA+3}, 0x10000, v{V_RA+1}
    v_add_u32 v{V_RA+4}, 0x20000, v{V_RA}
    v_add_u32 v{V_RA+5}, 0x20000, v{V_RA+1}
    v_lshrrev_b32 v1, 4, v0
    v_lshlrev_b32 v1, 9, v1
    v_and_b32 v{T}, 15, v0
    v_lshl_add_u32 v1, v{T}, 4, v1
    s_lshr_b32 s28, s16, 1
    s_lshl_b32 s28, s28, 13
    s_add_u32 s28, s28, 2048
    v_add_u32 v{V_RB}, s28, v1
    v_add_u32 v{V_RB+1}, 0x10000, v{V_RB}
    v_add_u32 v{V_RB+2}, 0x20000, v{V_RB}
    """)
    for t in range(NFIRST, R):
        for x in dma(t):
            a(x)
        a("s_nop 0")
        seq += [t] * 4

    def vm_for(t):
        last = max(i for i, s in enumerate(seq) if s == t)
        return len(seq) - 1 - last

    def reads(t):
        b = t % 2
        so = (t % R) * SLOT
        bank, so = so >> 16, so & 0xffff
        A_ = []
        for nt in range(4):
            for tt in range(2):
                A_.append((f"ds_read_b64_tr_b16 {vr(fa(b,nt)+2*tt,2)}, v{V_RA+2*bank+(nt&1)} offset:{so+tt*1024+(nt//2)*256}", fa(b, nt) + 2 * tt, 2))
        B_ = [(f"ds_read_b128 {vr(fb(b,mt),4)}, v{V_RB+bank} offset:{so+(mt//2)*4096+(mt&1)*256}", fb(b, mt), 4) for mt in range(4)]
        return [B_[0]] + A_ + B_[1:]

    a(f"s_waitcnt vmcnt({vm_for(0)})\ns_barrier")
    stamp(a, 1, dbg)
    if "stamp" in dbg:
        a("s_waitcnt lgkmcnt(0)")
    for r in reads(0):
        a.ds(*r)

    for t in range(32):
        b = t % 2
        rd = reads(t + 1) if t < 31 else []
        items = []
        m = 0
        for mt in range(4):
            for nt in range(4):
                a.need((fa(b, nt), 4), (fb(b, mt), 4))
                a(f"v_mfma_f32_16x16x32_bf16 {vr(acc(mt,nt),4)}, {vr(fa(b,nt),4)}, {vr(fb(b,mt),4)}, " + ("0" if t == 0 else vr(acc(mt, nt), 4)))
                if m == BAR and t < 31:
                    a.lds_drain()
                    a(f"s_waitcnt vmcnt({vm_for(t+1)})\ns_barrier")
                    if t + R < 32:
                        items = dma(t + R)
                        seq += [t + R] * 4
                if m > BAR:
                    if rd:
                        a.ds(*rd.pop(0))
                    if items and (m - BAR) % 2 == 0:
                        a(items.pop(0))
                        if len(items) == 1:
                            a(items.pop(0))
                m += 1
        assert not rd and not items
    stamp(a, 2, dbg)
    a(f"""
    v_and_b32 v1, 15, v0
    v_lshlrev_b32 v1, 12, v1
    v_bfe_u32 v{T}, v0, 4, 1
    v_lshl_add_u32 v1, v{T}, 5, v1
    v_lshrrev_b32 v{T}, 5, v0
    v_lshl_add_u32 v1, v{T}, 4, v1
    s_lshl_b32 s28, s17, 19
    s_lshr_b32 s29, s16, 1
    s_lshl_b32 s29, s29, 18
    s_add_u32 s28, s28, s29
    s_lshl_b32 s29, s19, 11
    s_add_u32 s28, s28, s29
    s_lshl_b32 s29, s18, 8
    s_add_u32 s28, s28, s29
    s_and_b32 s29, s16, 1
    s_lshl_b32 s29, s29, 7
    s_add_u32 s28, s28, s29
    """)
    n = 0
    for mt in range(4):
        for pr in range(2):
            d = FR + 4 * n
            n += 1
            x, y = acc(mt, 2 * pr), acc(mt, 2 * pr + 1)
            a(f"""
            v_cvt_pk_bf16_f32 v{d}, v{x}, v{x+1}
            v_cvt_pk_bf16_f32 v{d+1}, v{x+2}, v{x+3}
            v_cvt_pk_bf16_f32 v{d+2}, v{y}, v{y+1}
            v_cvt_pk_bf16_f32 v{d+3}, v{y+2}, v{y+3}
            s_nop 1
            v_permlane16_swap_b32 v{d}, v{d+2}
            v_permlane16_swap_b32 v{d+1}, v{d+3}
            buffer_store_dwordx4 {vr(d,4)}, v1, s[4:7], s28 offen offset:{pr*64}
            """)
        if mt < 3:
            a("s_add_u32 s28, s28, 65536")
    if "stamp" in dbg:
        stamp_out(a, int(dbg.split("stamp")[1][0]))
    a.label(f"L_{name}_end")
    a("s_endpgm")
    return a.text(), kernel_desc(name, NV, NV), LDS_TOTAL
```

```python
import sys
sys.path.insert(0, "gen")
from asmlib import *

HEAD = """; Kernarg layout for this problem (72 bytes, ptrs only, base s[0:1]):
"""


def build(kernels, path):
    s = HEAD
    for name, text, desc, grid, block, lds in kernels:
        s += f"; @launch kernel={name} grid=({grid},1,1) block=({block},1,1) lds={lds}\n"
    s += '.amdgcn_target "amdgcn-amd-amdhsa--gfx950"\n.text\n'
    seen = set()
    for name, text, desc, grid, block, lds in kernels:
        if name in seen:
            continue
        seen.add(name)
        s += text
    s += 'L_code_end:\n.section .rodata,"a"\n'
    seen = set()
    for name, text, desc, grid, block, lds in kernels:
        if name in seen:
            continue
        seen.add(name)
        s += ".p2align 6\n" + desc
    open(path, "w").write(s)


def main(path, stamps=False):
    import gemm2, attn3, oproj
    ks = []
    t, d, l = gemm2.qkv_kernel("qkv_kernel", dbg="stamp0" if stamps else "", rotmask=15, PH=0, xrot=0)
    ks.append(("qkv_kernel", t, d, 256, 256, l))
    t, d, l = attn3.attn_kernel("attn_kernel", dbg="stamp1" if stamps else "")
    ks.append(("attn_kernel", t, d, 256, 512, l))
    t, d, l = oproj.oproj_kernel("oproj_kernel", dbg="stamp2" if stamps else "")
    ks.append(("oproj_kernel", t, d, 256, 256, l))
    build(ks, path)


if __name__ == "__main__":
    main("concat_heads__mha_block__linear_attn_block__prompt.s")
    main("full_st.s", True)
```

```python
from asmlib import *
from gemm2 import MB, WS_Q, WS_KV, WS_PQ, WS_OA, WS_OB, WS_KVP, WS_ZP, WS_SIZE, stamp, stamp_out

NSLOT = 4
SLOT = 32768
LDS_B = NSLOT * SLOT
LDS_F = LDS_B + 4096
LDS_TOTAL = LDS_F + 64

V_L16 = 2
V_A = 3
V_B = 4
V_T = 5
Q = 12
PQ = 20
SEL = 28
S = [32, 48]
P = 64
O = 72
L = 88
ZL = 92
KB = [96, 104]
VB = [112, 120]
BL = 128
BF = 160
NEGM = BL
V_FW = 184
V_FR = 185
V_FV = 186
V_FS = 187
NV = 188


def mf32(d, a_, b_, c):
    return f"v_mfma_f32_32x32x16_bf16 {vr(d,16)}, {vr(a_,4)}, {vr(b_,4)}, " + (c if isinstance(c, str) else vr(c, 16))


def mf16(d, a_, b_, c):
    return f"v_mfma_f32_16x16x32_bf16 {vr(d,4)}, {vr(a_,4)}, {vr(b_,4)}, " + (c if isinstance(c, str) else vr(c, 4))


def max16(a, dst, src, extra):
    a(f"v_max3_f32 v{dst}, v{src}, v{src+1}, v{src+2}")
    for k in range(6):
        a(f"v_max3_f32 v{dst}, v{dst}, v{src+3+2*k}, v{src+4+2*k}")
    a(f"v_max3_f32 v{dst}, v{dst}, v{src+15}, v{extra}")


DEF_ORDER = "p1 M1 e0 r0 e1 r1 e2 r2 e3 M5 e4 r3 e5 x e6 x e7 M6 c0 c1 c2 c3 M2 e8 x e9 x e10 x e11 M3 e12 x e13 x e14 e15 w p0 M4 c4 c5 c6 c7"


def attn_kernel(name, dbg="", order=DEF_ORDER, touch=True, IA0=4, IA=2):
    a = Asm()
    a.raw(kernel_header(name))
    a(f"""
    s_cmp_ge_u32 s2, {8 if "few" in dbg else 64 if "some" in dbg else 256}
    s_cbranch_scc1 L_{name}_end
    """)
    if "stamp" in dbg:
        a("s_memrealtime s[40:41]\ns_memtime s[42:43]")
    T = V_T
    NX = order.split().count("x")
    a(f"""
    s_load_dwordx2 s[12:13], s[0:1], 64
    s_load_dwordx2 s[36:37], s[0:1], 16
    s_load_dwordx2 s[38:39], s[0:1], 40
    v_lshrrev_b32 v1, 6, v0
    v_and_b32 v0, 63, v0
    s_and_b32 s17, s2, 7
    v_readfirstlane_b32 s16, v1
    s_lshl_b32 s17, s17, 2
    s_lshr_b32 s28, s2, 6
    s_add_u32 s17, s17, s28
    s_bfe_u32 s18, s2, 0x30003
    v_lshlrev_b32 v{V_L16}, 4, v0
    s_mov_b32 s14, {WS_SIZE}
    s_mov_b32 s15, 0x20000
    s_lshl_b32 s19, s17, 18
    s_add_u32 s19, s19, {WS_KV}
    s_lshl_b32 s28, s16, 12
    s_add_u32 s20, s19, s28
    s_mov_b32 s21, s28
    s_lshl_b32 s29, s18, 3
    s_add_u32 s29, s29, s16
    s_lshl_b32 s22, s17, 17
    s_lshl_b32 s30, s29, 11
    s_add_u32 s22, s22, s30
    s_lshl_b32 s23, s29, 16
    s_lshl_b32 s30, s17, 11
    s_add_u32 s23, s23, s30
    s_mov_b32 m0, s21
    s_add_u32 s26, s22, {WS_PQ}
    s_add_u32 s22, s22, {WS_Q}
    s_mov_b32 s27, 0
    s_waitcnt lgkmcnt(0)
    """)

    def dma():
        out = []
        for k in range(4):
            out.append(f"buffer_load_dwordx4 v{V_L16}, s[12:15], s20 offen offset:{k*1024} lds")
        out.append(f"""s_add_u32 s27, s27, 1
            s_add_u32 s20, s20, {SLOT}
            s_cmp_ge_u32 s27, 8
            s_cselect_b32 s20, 0x40000000, s20
            s_add_u32 s21, s21, {SLOT}
            s_and_b32 s21, s21, {NSLOT*SLOT-1}
            s_mov_b32 m0, s21""")
        return out

    d0 = dma()
    for x in d0[:4]:
        a(x)
    for c in range(2):
        a(f"buffer_load_dwordx4 {vr(Q+4*c,4)}, v{V_L16}, s[12:15], s22 offen offset:{c*1024}")
    a(d0[4])
    a("s_nop 0")
    for x in dma():
        a(x)
    a(f"""
    v_bfe_u32 v1, v0, 4, 1
    v_lshlrev_b32 v{T}, 11, v1
    v_lshrrev_b32 v1, 5, v0
    v_lshl_add_u32 v{T}, v1, 15, v{T}
    v_and_b32 v1, 15, v0
    v_lshl_add_u32 v{T}, v1, 4, v{T}
    v_lshlrev_b32 v{T+1}, 7, v1
    s_bfe_u32 s28, s16, 0x10001
    s_and_b32 s29, s16, 1
    s_lshr_b32 s30, s16, 2
    s_lshl_b32 s24, s17, 16
    s_add_u32 s24, s24, {WS_KVP}
    s_lshl_b32 s31, s29, 10
    s_add_u32 s24, s24, s31
    s_lshl_b32 s31, s28, 9
    s_add_u32 s24, s24, s31
    s_lshl_b32 s31, s30, 8
    s_add_u32 s24, s24, s31
    s_lshl_b32 s25, s17, 11
    s_add_u32 s25, s25, {WS_ZP}
    s_lshl_b32 s31, s29, 6
    s_add_u32 s25, s25, s31
    s_lshl_b32 s31, s28, 5
    s_add_u32 s25, s25, s31
    s_lshl_b32 s31, s30, 4
    s_add_u32 s25, s25, s31
    v_mov_b32 v{V_A}, v{V_L16}
    v_add_u32 v{V_B}, {SLOT}, v{V_L16}
    s_mov_b32 s33, {SLOT}
    v_lshrrev_b32 v1, 4, v0
    v_lshrrev_b32 v{T+2}, 2, v0
    v_xor_b32 v1, v1, v{T+2}
    v_and_b32 v1, 1, v1
    v_cmp_eq_u32 vcc, 0, v1
    v_mov_b32 v1, 0x3f803f80
    v_cndmask_b32 v{SEL}, 0, v1, vcc
    v_cndmask_b32 v{SEL+1}, 0, v1, vcc
    v_cndmask_b32 v{SEL+2}, 0, v1, vcc
    v_cndmask_b32 v{SEL+3}, 0, v1, vcc
    s_and_b32 s28, s16, 3
    s_lshl_b32 s28, s28, 10
    s_lshl_b32 s31, s30, 9
    s_add_u32 s28, s28, s31
    s_add_u32 s28, s28, {LDS_B}
    v_and_b32 v1, 31, v0
    v_lshlrev_b32 v1, 4, v1
    v_add_u32 v{T+2}, s28, v1
    v_add_u32 v{T+3}, {LDS_B}, v{V_L16}
    v_lshlrev_b32 v{T+4}, 5, v0
    s_bitcmp1_b32 s2, 7
    s_cselect_b32 s8, s38, s36
    s_cselect_b32 s9, s39, s37
    s_mov_b32 s10, {2*MB}
    s_mov_b32 s11, 0x20000
    s_and_b32 s28, s2, 127
    s_lshl_b32 s28, s28, 3
    s_add_u32 s28, s28, s16
    s_lshl_b32 s32, s28, 11
    s_lshl_b32 s28, s16, 2
    s_add_u32 s28, s28, {LDS_F}
    v_mov_b32 v{V_FW}, s28
    v_and_b32 v1, 7, v0
    v_lshlrev_b32 v1, 2, v1
    v_add_u32 v{V_FR}, {LDS_F}, v1
    v_mov_b32 v{V_FS}, 0
    ds_write_b32 v{V_FW}, v{V_FS}
    """)
    for r in range(16):
        a(f"v_mov_b32 v{O+r}, 0")
    for r in range(4):
        a(f"v_mov_b32 v{L+r}, 0")
        a(f"v_mov_b32 v{P+4+r}, 0")
        a(f"v_mov_b32 v{VB[1]+4+r}, 0")
    a("s_waitcnt vmcnt(4) lgkmcnt(0)\ns_barrier")
    if "peel" not in dbg:
        stamp(a, 1, dbg)

    late = dma()
    for i in range(8):
        late.append(f"buffer_load_dwordx4 {vr(BL+4*i,4)}, v{T}, s[12:15], s24 offen" + ("\ns_add_u32 s24, s24, 4096" if i < 7 else ""))
    late.append(f"buffer_load_dwordx4 {vr(ZL,4)}, v{T+1}, s[12:15], s25 offen")
    for c in range(2):
        late.append(f"buffer_load_dwordx4 {vr(PQ+4*c,4)}, v{V_L16}, s[12:15], s26 offen offset:{c*1024}")

    def rdK(t2, buf):
        base, off = (V_A, t2 * 4096) if t2 < 8 else (V_B, (t2 - 8) * 4096)
        return [(f"ds_read_b128 {vr(KB[buf]+4*c,4)}, v{base} offset:{off+c*1024}", KB[buf] + 4 * c, 4) for c in range(2)]

    def rdV(t1, buf):
        base, off = (V_A, t1 * 4096) if t1 < 8 else (V_B, (t1 - 8) * 4096)
        return [(f"ds_read_b128 {vr(VB[buf]+4*c,4)}, v{base} offset:{off+2048+c*1024}", VB[buf] + 4 * c, 4) for c in range(2)]

    for r in rdK(0, 0) + rdK(1, 1) + rdV(0, 0):
        a.ds(*r)
    a.need((KB[0], 8))
    a(mf32(S[0], KB[0], Q, "0"))
    a(mf32(S[0], KB[0] + 4, Q + 4, S[0]))
    for x in late[:5]:
        a(x)
    late = late[5:]
    a.lds_drain()

    def slot(i, extra):
        X, Y = S[i % 2], S[(i + 1) % 2]
        Kn, Vc, Vp = KB[(i + 1) % 2], VB[i % 2], VB[(i + 1) % 2]
        rd = rdK(i + 2, i % 2) + rdV(i + 1, (i + 1) % 2)
        for tok in order.split():
            if tok == "x":
                if extra:
                    it = extra.pop(0)
                    if isinstance(it, tuple):
                        a.ds(*it)
                    elif it is not None:
                        a(it)
                continue
            if tok == "w":
                a.lds_drain()
                continue
            k = int(tok[1:])
            if ("noL" in dbg and tok in ("M4", "M6")) or ("noS" in dbg and tok in ("M1", "M2")) or ("noO" in dbg and tok in ("M3", "M5")) or ("noE" in dbg and tok[0] == "e") or ("noP" in dbg and tok[0] == "p"):
                continue
            if tok[0] == "e":
                a(f"v_exp_f32 v{X+k}, v{X+k}")
            elif tok[0] == "c":
                a(f"v_cvt_pk_bf16_f32 v{P+k}, v{X+2*k}, v{X+2*k+1}")
            elif tok[0] == "r":
                if "nord" not in dbg:
                    a.ds(*rd[k])
            elif tok[0] == "n":
                a(f"s_nop {k}")
            elif tok[0] == "p":
                a(f"s_setprio {k}")
            elif tok == "M1":
                a.need((Kn, 4))
                a(mf32(Y, Kn, Q, "0"))
            elif tok == "M2":
                a.need((Kn + 4, 4))
                a(mf32(Y, Kn + 4, Q + 4, Y))
            elif tok == "M3":
                a.need((Vc, 4))
                a(mf32(O, Vc, P, O))
            elif tok == "M4":
                a(mf16(L, SEL, P, L))
            elif tok == "M5":
                a.need((Vp + 4, 4))
                a(mf32(O, Vp + 4, P + 4, O))
            elif tok == "M6":
                a(mf16(L, SEL, P + 4, L))
            else:
                raise ValueError(tok)

    def bpart1():
        for st in (4, 8, 16):
            for i in range(0, 32, 2 * st):
                for r in range(4):
                    a(f"v_add_f32 v{BL+i+r}, v{BL+i+r}, v{BL+i+st+r}")
        for r in range(4):
            a(f"v_mov_b32 v{BL+4+r}, v{BL+r}")
        for sh in (1, 2, 4, 8):
            for r in range(4):
                a(f"v_add_f32_dpp v{ZL+r}, v{ZL+r}, v{ZL+r} row_ror:{sh} row_mask:0xf bank_mask:0xf")
            if sh == 1:
                for r in range(4):
                    a(f"v_permlane32_swap_b32 v{BL+r}, v{BL+4+r}")
            elif sh == 2:
                for r in range(4):
                    a(f"v_add_f32 v{BL+r}, v{BL+r}, v{BL+4+r}")
            elif sh == 4:
                a(f"v_cvt_pk_bf16_f32 v{BL+8}, v{BL}, v{BL+1}")
                a(f"v_cvt_pk_bf16_f32 v{BL+9}, v{BL+2}, v{BL+3}")
        a(f"v_cvt_pk_bf16_f32 v{BL+10}, v{ZL}, v{ZL+1}")
        a(f"v_cvt_pk_bf16_f32 v{BL+11}, v{ZL+2}, v{ZL+3}")
        a.ds(f"ds_write_b128 v{T+2}, {vr(BL+8,4)}")

    def bpart2():
        for c in range(2):
            for dd in range(2):
                w = 2 * c + dd
                a.ds(f"ds_read_b64 {vr(BF+4*c+2*dd,2)}, v{T+3} offset:{w*1024}", BF + 4 * c + 2 * dd, 2)
                a.ds(f"ds_read_b64 {vr(BF+8+4*c+2*dd,2)}, v{T+3} offset:{w*1024+8}", BF + 8 + 4 * c + 2 * dd, 2)

    NUM, DEN = BL, BL + 16

    def bpart3():
        a.need((BF, 16))
        a(mf32(NUM, BF, PQ, "0"))
        a(mf32(DEN, BF + 8, PQ, "0"))
        a(mf32(NUM, BF + 4, PQ + 4, NUM))
        a(mf32(DEN, BF + 12, PQ + 4, DEN))

    def bpart4():
        a(f"v_add_f32 v{DEN}, {hex(f32bits(1e-6))}, v{DEN}")
        a(f"v_rcp_f32 v{DEN}, v{DEN}")
        a(f"s_add_u32 s28, s23, {WS_OB}")
        for r in range(16):
            a(f"v_mul_f32 v{NUM+r}, v{NUM+r}, v{DEN}")
        for k in range(8):
            a(f"v_cvt_pk_bf16_f32 v{BF+16+k}, v{NUM+2*k}, v{NUM+2*k+1}")
        a(f"buffer_store_dwordx4 {vr(BF+16,4)}, v{V_L16}, s[12:15], s28 offen")
        a(f"buffer_store_dwordx4 {vr(BF+20,4)}, v{V_L16}, s[12:15], s28 offen offset:1024")

    spins = []

    def stage(peel):
        nonlocal late
        ia = IA0 if peel == 0 else IA
        tag = f"{name}_{peel}"
        for i in range(8):
            pre = []
            if i == ia:
                assert not late
                a(f"s_waitcnt vmcnt({ {0: 15, 1: 5 if touch else 4, None: 4}[peel] })")
                if peel == 1:
                    bpart1()
                a(f"v_add_u32 v{V_FS}, 1, v{V_FS}")
                a.ds(f"ds_write_b32 v{V_FW}, v{V_FS}")
            if i == 5:
                pre = [(f"ds_read_b32 v{V_FV}, v{V_FR}", V_FV, 1)]
            if i == 6:
                assert not late
                a.need((V_FV, 1))
                a(f"""
                v_cmp_ge_u32 vcc, v{V_FV}, v{V_FS}
                s_cmp_eq_u64 vcc, -1
                s_cbranch_scc0 L_{tag}_spin
                """)
                a.label(f"L_{tag}_go")
                spins.append(tag)
                if peel == 1:
                    bpart2()
                late = dma()
                if peel == 0 and touch:
                    late.append(f"buffer_load_dword v{T+5}, v{T+4}, s[8:11], s32 offen")
            if i == 7 and peel == 1:
                bpart3()
            extra = late[:NX]
            late = late[NX:]
            while pre and len(extra) < NX - 1:
                extra.append(None)
            extra += pre
            slot(i, extra)
            assert not extra
        assert not late
        if peel == 1:
            bpart4()
        a(f"""
        s_add_u32 s33, s33, {SLOT}
        s_and_b32 s33, s33, {NSLOT*SLOT-1}
        v_mov_b32 v{V_A}, v{V_B}
        v_add_u32 v{V_B}, s33, v{V_L16}
        """)

    stage(0)
    stage(1)
    q0 = list(a.ldsq)
    a("s_mov_b32 s34, 6")
    if "peel" in dbg:
        stamp(a, 1, dbg)
    a.label(f"L_{name}_loop")
    stage(None)
    assert a.ldsq == q0, (a.ldsq, q0)
    a(f"""
    s_sub_u32 s34, s34, 1
    s_cmp_lg_u32 s34, 0
    s_cbranch_scc1 L_{name}_loop
    """)
    a(mf32(O, VB[1] + 4, P + 4, O))
    a(mf16(L, SEL, P + 4, L))
    a.ldsq = []
    a("s_waitcnt vmcnt(0) lgkmcnt(0)")
    stamp(a, 2, dbg)
    a(f"""
    v_mov_b32 v{T}, {hex(f32bits(2.0**60))}
    v_mov_b32 v{T+1}, {hex(f32bits(2.0**126))}
    v_mov_b32 v{T+2}, {hex(f32bits(2.0**-60))}
    s_add_u32 s30, s23, {WS_OA}
    s_nop 6
    """)
    a(f"v_add_f32 v1, |v{O}|, |v{O+1}|")
    for r in range(2, 16):
        a(f"v_add_f32 v1, v1, |v{O+r}|")
    a(f"""
    v_cmp_lt_f32 vcc, v{L}, v{T}
    v_cmp_lt_f32 s[28:29], v1, v{T+1}
    s_and_b64 vcc, vcc, s[28:29]
    v_cmp_gt_f32 s[28:29], v{L}, v{T+2}
    s_and_b64 vcc, vcc, s[28:29]
    s_cmp_eq_u64 vcc, -1
    """)
    if "no" not in dbg:
        a(f"s_cbranch_scc0 L_{name}_slow")
    a.label(f"L_{name}_fin")
    a(f"v_rcp_f32 v1, v{L}\ns_nop 0")
    for r in range(16):
        a(f"v_mul_f32 v{O+r}, v{O+r}, v1")
    for k in range(8):
        a(f"v_cvt_pk_bf16_f32 v{P+k}, v{O+2*k}, v{O+2*k+1}")
    a(f"buffer_store_dwordx4 {vr(P,4)}, v{V_L16}, s[12:15], s30 offen")
    a(f"buffer_store_dwordx4 {vr(P+4,4)}, v{V_L16}, s[12:15], s30 offen offset:1024")
    if "stamp" in dbg:
        stamp_out(a, int(dbg.split("stamp")[1][0]), nw_shift=3)
    a.label(f"L_{name}_end")
    a("s_endpgm")

    for tag in spins:
        a.label(f"L_{tag}_spin")
        a(f"""
        s_sleep 1
        ds_read_b32 v{V_FV}, v{V_FR}
        s_waitcnt lgkmcnt(0)
        v_cmp_ge_u32 vcc, v{V_FV}, v{V_FS}
        s_cmp_eq_u64 vcc, -1
        s_cbranch_scc0 L_{tag}_spin
        s_branch L_{tag}_go
        """)
    SS = S[0]
    a.label(f"L_{name}_slow")
    a(f"""
    s_mov_b32 s28, s19
    s_mov_b32 s29, 64
    v_mov_b32 v{T+3}, 0xff800000
    """)
    a.label(f"L_{name}_slowa")
    a(f"""
    buffer_load_dwordx4 {vr(KB[0],4)}, v{V_L16}, s[12:15], s28 offen
    buffer_load_dwordx4 {vr(KB[0]+4,4)}, v{V_L16}, s[12:15], s28 offen offset:1024
    s_waitcnt vmcnt(0)
    """)
    a(mf32(SS, KB[0], Q, "0"))
    a(mf32(SS, KB[0] + 4, Q + 4, SS))
    a("s_nop 7\ns_nop 3")
    max16(a, 1, SS, T + 3)
    a(f"""
    v_mov_b32 v{T+3}, v1
    s_add_u32 s28, s28, 4096
    s_sub_u32 s29, s29, 1
    s_cmp_lg_u32 s29, 0
    s_cbranch_scc1 L_{name}_slowa
    s_nop 1
    v_permlane32_swap_b32 v1, v{T+3}
    s_nop 1
    v_max_f32 v1, v1, v{T+3}
    """)
    for r in range(16):
        a(f"v_mul_f32 v{NEGM+r}, -1.0, v1")
    for r in range(16):
        a(f"v_mov_b32 v{O+r}, 0")
    for r in range(4):
        a(f"v_mov_b32 v{L+r}, 0")
    a("s_mov_b32 s28, s19\ns_mov_b32 s29, 64")
    a.label(f"L_{name}_slowb")
    a(f"""
    buffer_load_dwordx4 {vr(KB[0],4)}, v{V_L16}, s[12:15], s28 offen
    buffer_load_dwordx4 {vr(KB[0]+4,4)}, v{V_L16}, s[12:15], s28 offen offset:1024
    buffer_load_dwordx4 {vr(VB[0],4)}, v{V_L16}, s[12:15], s28 offen offset:2048
    buffer_load_dwordx4 {vr(VB[0]+4,4)}, v{V_L16}, s[12:15], s28 offen offset:3072
    s_waitcnt vmcnt(0)
    """)
    a(mf32(SS, KB[0], Q, NEGM))
    a(mf32(SS, KB[0] + 4, Q + 4, SS))
    a("s_nop 7\ns_nop 3")
    for k in range(16):
        a(f"v_exp_f32 v{SS+k}, v{SS+k}")
    a("s_nop 0")
    for k in range(8):
        a(f"v_cvt_pk_bf16_f32 v{P+k}, v{SS+2*k}, v{SS+2*k+1}")
    a("s_nop 1")
    a(mf32(O, VB[0], P, O))
    a(mf16(L, SEL, P, L))
    a(mf32(O, VB[0] + 4, P + 4, O))
    a(mf16(L, SEL, P + 4, L))
    a(f"""
    s_add_u32 s28, s28, 4096
    s_sub_u32 s29, s29, 1
    s_cmp_lg_u32 s29, 0
    s_cbranch_scc1 L_{name}_slowb
    s_nop 7
    s_nop 3
    s_branch L_{name}_fin
    """)
    return a.text(), kernel_desc(name, NV, NV), LDS_TOTAL
```

```python
from asmlib import *
from gemm2 import MB, WS_Q, WS_KV, WS_PQ, WS_OA, WS_OB, WS_KVP, WS_ZP, WS_SIZE, stamp, stamp_out

NSLOT = 4
SLOT = 32768
LDS_B = NSLOT * SLOT
LDS_F = LDS_B + 4096
LDS_TOTAL = LDS_F + 64

V_L16 = 2
V_A = 3
V_B = 4
V_T = 5
Q = 12
PQ = 20
SEL = 28
S = [32, 48]
P = 64
O = 72
L = 88
ZL = 92
KB = [96, 104]
VB = [112, 120]
BL = 128
BF = 160
NEGM = BL
V_FW = 184
V_FR = 185
V_FV = 186
V_FS = 187
NV = 188


def mf32(d, a_, b_, c):
    return f"v_mfma_f32_32x32x16_bf16 {vr(d,16)}, {vr(a_,4)}, {vr(b_,4)}, " + (c if isinstance(c, str) else vr(c, 16))


def mf16(d, a_, b_, c):
    return f"v_mfma_f32_16x16x32_bf16 {vr(d,4)}, {vr(a_,4)}, {vr(b_,4)}, " + (c if isinstance(c, str) else vr(c, 4))


def max16(a, dst, src, extra):
    a(f"v_max3_f32 v{dst}, v{src}, v{src+1}, v{src+2}")
    for k in range(6):
        a(f"v_max3_f32 v{dst}, v{dst}, v{src+3+2*k}, v{src+4+2*k}")
    a(f"v_max3_f32 v{dst}, v{dst}, v{src+15}, v{extra}")


DEF_ORDER = "p1 M1 e0 r0 e1 r1 e2 r2 e3 M5 e4 r3 e5 x e6 x e7 M6 c0 c1 c2 c3 M2 e8 x e9 x e10 x e11 M3 e12 x e13 x e14 e15 w p0 M4 c4 c5 c6 c7"


def attn_kernel(name, dbg="", order=DEF_ORDER, touch=True, IA0=4, IA=2):
    a = Asm()
    a.raw(kernel_header(name))
    a(f"""
    s_cmp_ge_u32 s2, {8 if "few" in dbg else 64 if "some" in dbg else 256}
    s_cbranch_scc1 L_{name}_end
    """)
    if "stamp" in dbg:
        a("s_memrealtime s[40:41]\ns_memtime s[42:43]\ns_mov_b32 s60, 0\ns_mov_b32 s61, 0")
    T = V_T
    NX = order.split().count("x")
    a(f"""
    s_load_dwordx2 s[12:13], s[0:1], 64
    s_load_dwordx2 s[36:37], s[0:1], 16
    s_load_dwordx2 s[38:39], s[0:1], 40
    v_lshrrev_b32 v1, 6, v0
    v_and_b32 v0, 63, v0
    s_and_b32 s17, s2, 7
    v_readfirstlane_b32 s16, v1
    s_lshl_b32 s17, s17, 2
    s_lshr_b32 s28, s2, 6
    s_add_u32 s17, s17, s28
    s_bfe_u32 s18, s2, 0x30003
    v_lshlrev_b32 v{V_L16}, 4, v0
    s_mov_b32 s14, {WS_SIZE}
    s_mov_b32 s15, 0x20000
    s_lshl_b32 s19, s17, 18
    s_add_u32 s19, s19, {WS_KV}
    s_lshl_b32 s28, s16, 12
    s_add_u32 s20, s19, s28
    s_mov_b32 s21, s28
    s_lshl_b32 s29, s18, 3
    s_add_u32 s29, s29, s16
    s_lshl_b32 s22, s17, 17
    s_lshl_b32 s30, s29, 11
    s_add_u32 s22, s22, s30
    s_lshl_b32 s23, s29, 16
    s_lshl_b32 s30, s17, 11
    s_add_u32 s23, s23, s30
    s_mov_b32 m0, s21
    s_add_u32 s26, s22, {WS_PQ}
    s_add_u32 s22, s22, {WS_Q}
    s_mov_b32 s27, 0
    s_waitcnt lgkmcnt(0)
    """)

    def dma():
        out = []
        for k in range(4):
            out.append(f"buffer_load_dwordx4 v{V_L16}, s[12:15], s20 offen offset:{k*1024} lds")
        out.append(f"""s_add_u32 s27, s27, 1
            s_add_u32 s20, s20, {SLOT}
            s_cmp_ge_u32 s27, 8
            s_cselect_b32 s20, 0x40000000, s20
            s_add_u32 s21, s21, {SLOT}
            s_and_b32 s21, s21, {NSLOT*SLOT-1}
            s_mov_b32 m0, s21""")
        return out

    d0 = dma()
    for x in d0[:4]:
        a(x)
    for c in range(2):
        a(f"buffer_load_dwordx4 {vr(Q+4*c,4)}, v{V_L16}, s[12:15], s22 offen offset:{c*1024}")
    a(d0[4])
    a("s_nop 0")
    for x in dma():
        a(x)
    a(f"""
    v_bfe_u32 v1, v0, 4, 1
    v_lshlrev_b32 v{T}, 11, v1
    v_lshrrev_b32 v1, 5, v0
    v_lshl_add_u32 v{T}, v1, 15, v{T}
    v_and_b32 v1, 15, v0
    v_lshl_add_u32 v{T}, v1, 4, v{T}
    v_lshlrev_b32 v{T+1}, 7, v1
    s_bfe_u32 s28, s16, 0x10001
    s_and_b32 s29, s16, 1
    s_lshr_b32 s30, s16, 2
    s_lshl_b32 s24, s17, 16
    s_add_u32 s24, s24, {WS_KVP}
    s_lshl_b32 s31, s29, 10
    s_add_u32 s24, s24, s31
    s_lshl_b32 s31, s28, 9
    s_add_u32 s24, s24, s31
    s_lshl_b32 s31, s30, 8
    s_add_u32 s24, s24, s31
    s_lshl_b32 s25, s17, 11
    s_add_u32 s25, s25, {WS_ZP}
    s_lshl_b32 s31, s29, 6
    s_add_u32 s25, s25, s31
    s_lshl_b32 s31, s28, 5
    s_add_u32 s25, s25, s31
    s_lshl_b32 s31, s30, 4
    s_add_u32 s25, s25, s31
    v_mov_b32 v{V_A}, v{V_L16}
    v_add_u32 v{V_B}, {SLOT}, v{V_L16}
    s_mov_b32 s33, {SLOT}
    v_lshrrev_b32 v1, 4, v0
    v_lshrrev_b32 v{T+2}, 2, v0
    v_xor_b32 v1, v1, v{T+2}
    v_and_b32 v1, 1, v1
    v_cmp_eq_u32 vcc, 0, v1
    v_mov_b32 v1, 0x3f803f80
    v_cndmask_b32 v{SEL}, 0, v1, vcc
    v_cndmask_b32 v{SEL+1}, 0, v1, vcc
    v_cndmask_b32 v{SEL+2}, 0, v1, vcc
    v_cndmask_b32 v{SEL+3}, 0, v1, vcc
    s_and_b32 s28, s16, 3
    s_lshl_b32 s28, s28, 10
    s_lshl_b32 s31, s30, 9
    s_add_u32 s28, s28, s31
    s_add_u32 s28, s28, {LDS_B}
    v_and_b32 v1, 31, v0
    v_lshlrev_b32 v1, 4, v1
    v_add_u32 v{T+2}, s28, v1
    v_add_u32 v{T+3}, {LDS_B}, v{V_L16}
    v_lshlrev_b32 v{T+4}, 5, v0
    s_bitcmp1_b32 s2, 7
    s_cselect_b32 s8, s38, s36
    s_cselect_b32 s9, s39, s37
    s_mov_b32 s10, {2*MB}
    s_mov_b32 s11, 0x20000
    s_and_b32 s28, s2, 127
    s_lshl_b32 s28, s28, 3
    s_add_u32 s28, s28, s16
    s_lshl_b32 s32, s28, 11
    s_lshl_b32 s28, s16, 2
    s_add_u32 s28, s28, {LDS_F}
    v_mov_b32 v{V_FW}, s28
    v_and_b32 v1, 7, v0
    v_lshlrev_b32 v1, 2, v1
    v_add_u32 v{V_FR}, {LDS_F}, v1
    v_mov_b32 v{V_FS}, 0
    ds_write_b32 v{V_FW}, v{V_FS}
    """)
    for r in range(16):
        a(f"v_mov_b32 v{O+r}, 0")
    for r in range(4):
        a(f"v_mov_b32 v{L+r}, 0")
        a(f"v_mov_b32 v{P+4+r}, 0")
        a(f"v_mov_b32 v{VB[1]+4+r}, 0")
    a("s_waitcnt vmcnt(4) lgkmcnt(0)\ns_barrier")
    if "peel" not in dbg:
        stamp(a, 1, dbg)

    late = dma()
    for i in range(8):
        late.append(f"buffer_load_dwordx4 {vr(BL+4*i,4)}, v{T}, s[12:15], s24 offen" + ("\ns_add_u32 s24, s24, 4096" if i < 7 else ""))
    late.append(f"buffer_load_dwordx4 {vr(ZL,4)}, v{T+1}, s[12:15], s25 offen")
    for c in range(2):
        late.append(f"buffer_load_dwordx4 {vr(PQ+4*c,4)}, v{V_L16}, s[12:15], s26 offen offset:{c*1024}")

    def rdK(t2, buf):
        base, off = (V_A, t2 * 4096) if t2 < 8 else (V_B, (t2 - 8) * 4096)
        return [(f"ds_read_b128 {vr(KB[buf]+4*c,4)}, v{base} offset:{off+c*1024}", KB[buf] + 4 * c, 4) for c in range(2)]

    def rdV(t1, buf):
        base, off = (V_A, t1 * 4096) if t1 < 8 else (V_B, (t1 - 8) * 4096)
        return [(f"ds_read_b128 {vr(VB[buf]+4*c,4)}, v{base} offset:{off+2048+c*1024}", VB[buf] + 4 * c, 4) for c in range(2)]

    for r in rdK(0, 0) + rdK(1, 1) + rdV(0, 0):
        a.ds(*r)
    a.need((KB[0], 8))
    a(mf32(S[0], KB[0], Q, "0"))
    a(mf32(S[0], KB[0] + 4, Q + 4, S[0]))
    for x in late[:5]:
        a(x)
    late = late[5:]
    a.lds_drain()

    def slot(i, extra):
        X, Y = S[i % 2], S[(i + 1) % 2]
        Kn, Vc, Vp = KB[(i + 1) % 2], VB[i % 2], VB[(i + 1) % 2]
        rd = rdK(i + 2, i % 2) + rdV(i + 1, (i + 1) % 2)
        for tok in order.split():
            if tok == "x":
                if extra:
                    it = extra.pop(0)
                    if isinstance(it, tuple):
                        a.ds(*it)
                    elif it is not None:
                        a(it)
                continue
            if tok == "w":
                a.lds_drain()
                continue
            k = int(tok[1:])
            if ("noL" in dbg and tok in ("M4", "M6")) or ("noS" in dbg and tok in ("M1", "M2")) or ("noO" in dbg and tok in ("M3", "M5")) or ("noE" in dbg and tok[0] == "e") or ("noP" in dbg and tok[0] == "p"):
                continue
            if tok[0] == "e":
                a(f"v_exp_f32 v{X+k}, v{X+k}")
            elif tok[0] == "c":
                a(f"v_cvt_pk_bf16_f32 v{P+k}, v{X+2*k}, v{X+2*k+1}")
            elif tok[0] == "r":
                if "nord" not in dbg:
                    a.ds(*rd[k])
            elif tok[0] == "n":
                a(f"s_nop {k}")
            elif tok[0] == "p":
                a(f"s_setprio {k}")
            elif tok == "M1":
                a.need((Kn, 4))
                a(mf32(Y, Kn, Q, "0"))
            elif tok == "M2":
                a.need((Kn + 4, 4))
                a(mf32(Y, Kn + 4, Q + 4, Y))
            elif tok == "M3":
                a.need((Vc, 4))
                a(mf32(O, Vc, P, O))
            elif tok == "M4":
                a(mf16(L, SEL, P, L))
            elif tok == "M5":
                a.need((Vp + 4, 4))
                a(mf32(O, Vp + 4, P + 4, O))
            elif tok == "M6":
                a(mf16(L, SEL, P + 4, L))
            else:
                raise ValueError(tok)

    def bpart1():
        for st in (4, 8, 16):
            for i in range(0, 32, 2 * st):
                for r in range(4):
                    a(f"v_add_f32 v{BL+i+r}, v{BL+i+r}, v{BL+i+st+r}")
        for r in range(4):
            a(f"v_mov_b32 v{BL+4+r}, v{BL+r}")
        for sh in (1, 2, 4, 8):
            for r in range(4):
                a(f"v_add_f32_dpp v{ZL+r}, v{ZL+r}, v{ZL+r} row_ror:{sh} row_mask:0xf bank_mask:0xf")
            if sh == 1:
                for r in range(4):
                    a(f"v_permlane32_swap_b32 v{BL+r}, v{BL+4+r}")
            elif sh == 2:
                for r in range(4):
                    a(f"v_add_f32 v{BL+r}, v{BL+r}, v{BL+4+r}")
            elif sh == 4:
                a(f"v_cvt_pk_bf16_f32 v{BL+8}, v{BL}, v{BL+1}")
                a(f"v_cvt_pk_bf16_f32 v{BL+9}, v{BL+2}, v{BL+3}")
        a(f"v_cvt_pk_bf16_f32 v{BL+10}, v{ZL}, v{ZL+1}")
        a(f"v_cvt_pk_bf16_f32 v{BL+11}, v{ZL+2}, v{ZL+3}")
        a.ds(f"ds_write_b128 v{T+2}, {vr(BL+8,4)}")

    def bpart2():
        for c in range(2):
            for dd in range(2):
                w = 2 * c + dd
                a.ds(f"ds_read_b64 {vr(BF+4*c+2*dd,2)}, v{T+3} offset:{w*1024}", BF + 4 * c + 2 * dd, 2)
                a.ds(f"ds_read_b64 {vr(BF+8+4*c+2*dd,2)}, v{T+3} offset:{w*1024+8}", BF + 8 + 4 * c + 2 * dd, 2)

    NUM, DEN = BL, BL + 16

    def bpart3():
        a.need((BF, 16))
        a(mf32(NUM, BF, PQ, "0"))
        a(mf32(DEN, BF + 8, PQ, "0"))
        a(mf32(NUM, BF + 4, PQ + 4, NUM))
        a(mf32(DEN, BF + 12, PQ + 4, DEN))

    def bpart4():
        a(f"v_add_f32 v{DEN}, {hex(f32bits(1e-6))}, v{DEN}")
        a(f"v_rcp_f32 v{DEN}, v{DEN}")
        a(f"s_add_u32 s28, s23, {WS_OB}")
        for r in range(16):
            a(f"v_mul_f32 v{NUM+r}, v{NUM+r}, v{DEN}")
        for k in range(8):
            a(f"v_cvt_pk_bf16_f32 v{BF+16+k}, v{NUM+2*k}, v{NUM+2*k+1}")
        a(f"buffer_store_dwordx4 {vr(BF+16,4)}, v{V_L16}, s[12:15], s28 offen")
        a(f"buffer_store_dwordx4 {vr(BF+20,4)}, v{V_L16}, s[12:15], s28 offen offset:1024")

    spins = []

    def stage(peel):
        nonlocal late
        ia = IA0 if peel == 0 else IA
        tag = f"{name}_{peel}"
        for i in range(8):
            pre = []
            if i == ia and not (peel is None and "noflag" in dbg):
                assert not late
                a(f"s_waitcnt vmcnt({ {0: 15, 1: 5 if touch else 4, None: 4}[peel] })")
                if peel == 1:
                    bpart1()
                a(f"v_add_u32 v{V_FS}, 1, v{V_FS}")
                a.ds(f"ds_write_b32 v{V_FW}, v{V_FS}")
            if i == 5 and not (peel is None and "noflag" in dbg):
                pre = [(f"ds_read_b32 v{V_FV}, v{V_FR}", V_FV, 1)]
            if i == 6:
                assert not late
                if not (peel is None and "noflag" in dbg):
                    a.need((V_FV, 1))
                    a(f"""
                    v_cmp_ge_u32 vcc, v{V_FV}, v{V_FS}
                    s_cmp_eq_u64 vcc, -1
                    s_cbranch_scc0 L_{tag}_spin
                    """)
                    a.label(f"L_{tag}_go")
                    spins.append(tag)
                if peel == 1:
                    bpart2()
                late = dma() if not (peel is None and "nodma" in dbg) else []
                if peel == 0 and touch:
                    late.append(f"buffer_load_dword v{T+5}, v{T+4}, s[8:11], s32 offen")
            if i == 7 and peel == 1:
                bpart3()
            extra = late[:NX]
            late = late[NX:]
            while pre and len(extra) < NX - 1:
                extra.append(None)
            extra += pre
            slot(i, extra)
            assert not extra
        assert not late
        if peel == 1:
            bpart4()
        a(f"""
        s_add_u32 s33, s33, {SLOT}
        s_and_b32 s33, s33, {NSLOT*SLOT-1}
        v_mov_b32 v{V_A}, v{V_B}
        v_add_u32 v{V_B}, s33, v{V_L16}
        """)

    stage(0)
    stage(1)
    q0 = list(a.ldsq)
    a("s_mov_b32 s34, 6")
    if "peel" in dbg:
        stamp(a, 1, dbg)
    a.label(f"L_{name}_loop")
    stage(None)
    assert a.ldsq == q0, (a.ldsq, q0)
    a(f"""
    s_sub_u32 s34, s34, 1
    s_cmp_lg_u32 s34, 0
    s_cbranch_scc1 L_{name}_loop
    """)
    a(mf32(O, VB[1] + 4, P + 4, O))
    a(mf16(L, SEL, P + 4, L))
    a.ldsq = []
    a("s_waitcnt vmcnt(0) lgkmcnt(0)")
    stamp(a, 2, dbg)
    a(f"""
    v_mov_b32 v{T}, {hex(f32bits(2.0**60))}
    v_mov_b32 v{T+1}, {hex(f32bits(2.0**126))}
    v_mov_b32 v{T+2}, {hex(f32bits(2.0**-60))}
    s_add_u32 s30, s23, {WS_OA}
    s_nop 6
    """)
    a(f"v_add_f32 v1, |v{O}|, |v{O+1}|")
    for r in range(2, 16):
        a(f"v_add_f32 v1, v1, |v{O+r}|")
    a(f"""
    v_cmp_lt_f32 vcc, v{L}, v{T}
    v_cmp_lt_f32 s[28:29], v1, v{T+1}
    s_and_b64 vcc, vcc, s[28:29]
    v_cmp_gt_f32 s[28:29], v{L}, v{T+2}
    s_and_b64 vcc, vcc, s[28:29]
    s_cmp_eq_u64 vcc, -1
    """)
    if "no" not in dbg:
        a(f"s_cbranch_scc0 L_{name}_slow")
    a.label(f"L_{name}_fin")
    a(f"v_rcp_f32 v1, v{L}\ns_nop 0")
    for r in range(16):
        a(f"v_mul_f32 v{O+r}, v{O+r}, v1")
    for k in range(8):
        a(f"v_cvt_pk_bf16_f32 v{P+k}, v{O+2*k}, v{O+2*k+1}")
    a(f"buffer_store_dwordx4 {vr(P,4)}, v{V_L16}, s[12:15], s30 offen")
    a(f"buffer_store_dwordx4 {vr(P+4,4)}, v{V_L16}, s[12:15], s30 offen offset:1024")
    if "stamp" in dbg:
        stamp_out(a, int(dbg.split("stamp")[1][0]), nw_shift=3)
    a.label(f"L_{name}_end")
    a("s_endpgm")

    for tag in spins:
        a.label(f"L_{tag}_spin")
        if "stamp" in dbg:
            a(f"s_add_u32 s{61 if 'None' in tag else 60}, s{61 if 'None' in tag else 60}, 1")
        a(f"""
        s_sleep 1
        ds_read_b32 v{V_FV}, v{V_FR}
        s_waitcnt lgkmcnt(0)
        v_cmp_ge_u32 vcc, v{V_FV}, v{V_FS}
        s_cmp_eq_u64 vcc, -1
        s_cbranch_scc0 L_{tag}_spin
        s_branch L_{tag}_go
        """)
    SS = S[0]
    a.label(f"L_{name}_slow")
    a(f"""
    s_mov_b32 s28, s19
    s_mov_b32 s29, 64
    v_mov_b32 v{T+3}, 0xff800000
    """)
    a.label(f"L_{name}_slowa")
    a(f"""
    buffer_load_dwordx4 {vr(KB[0],4)}, v{V_L16}, s[12:15], s28 offen
    buffer_load_dwordx4 {vr(KB[0]+4,4)}, v{V_L16}, s[12:15], s28 offen offset:1024
    s_waitcnt vmcnt(0)
    """)
    a(mf32(SS, KB[0], Q, "0"))
    a(mf32(SS, KB[0] + 4, Q + 4, SS))
    a("s_nop 7\ns_nop 3")
    max16(a, 1, SS, T + 3)
    a(f"""
    v_mov_b32 v{T+3}, v1
    s_add_u32 s28, s28, 4096
    s_sub_u32 s29, s29, 1
    s_cmp_lg_u32 s29, 0
    s_cbranch_scc1 L_{name}_slowa
    s_nop 1
    v_permlane32_swap_b32 v1, v{T+3}
    s_nop 1
    v_max_f32 v1, v1, v{T+3}
    """)
    for r in range(16):
        a(f"v_mul_f32 v{NEGM+r}, -1.0, v1")
    for r in range(16):
        a(f"v_mov_b32 v{O+r}, 0")
    for r in range(4):
        a(f"v_mov_b32 v{L+r}, 0")
    a("s_mov_b32 s28, s19\ns_mov_b32 s29, 64")
    a.label(f"L_{name}_slowb")
    a(f"""
    buffer_load_dwordx4 {vr(KB[0],4)}, v{V_L16}, s[12:15], s28 offen
    buffer_load_dwordx4 {vr(KB[0]+4,4)}, v{V_L16}, s[12:15], s28 offen offset:1024
    buffer_load_dwordx4 {vr(VB[0],4)}, v{V_L16}, s[12:15], s28 offen offset:2048
    buffer_load_dwordx4 {vr(VB[0]+4,4)}, v{V_L16}, s[12:15], s28 offen offset:3072
    s_waitcnt vmcnt(0)
    """)
    a(mf32(SS, KB[0], Q, NEGM))
    a(mf32(SS, KB[0] + 4, Q + 4, SS))
    a("s_nop 7\ns_nop 3")
    for k in range(16):
        a(f"v_exp_f32 v{SS+k}, v{SS+k}")
    a("s_nop 0")
    for k in range(8):
        a(f"v_cvt_pk_bf16_f32 v{P+k}, v{SS+2*k}, v{SS+2*k+1}")
    a("s_nop 1")
    a(mf32(O, VB[0], P, O))
    a(mf16(L, SEL, P, L))
    a(mf32(O, VB[0] + 4, P + 4, O))
    a(mf16(L, SEL, P + 4, L))
    a(f"""
    s_add_u32 s28, s28, 4096
    s_sub_u32 s29, s29, 1
    s_cmp_lg_u32 s29, 0
    s_cbranch_scc1 L_{name}_slowb
    s_nop 7
    s_nop 3
    s_branch L_{name}_fin
    """)
    return a.text(), kernel_desc(name, NV, NV), LDS_TOTAL
```

```python
from asmlib import *
from gemm2 import MB, WS_Q, WS_KV, WS_PQ, WS_OA, WS_OB, WS_KVP, WS_ZP, WS_SIZE, stamp, stamp_out

NSLOT = 4
SLOT = 32768
LDS_B = NSLOT * SLOT
LDS_TOTAL = LDS_B + 4096

V_L16 = 2
V_A = 3
V_B = 4
V_T = 5
Q = 12
PQ = 20
SEL = 28
S = [32, 48]
P = 64
O = 72
L = 88
ZL = 92
KB = [96, 104]
VB = [112, 120]
BL = 128
BF = 160
NEGM = BL
NV = 184


def mf32(d, a_, b_, c):
    return f"v_mfma_f32_32x32x16_bf16 {vr(d,16)}, {vr(a_,4)}, {vr(b_,4)}, " + (c if isinstance(c, str) else vr(c, 16))


def mf16(d, a_, b_, c):
    return f"v_mfma_f32_16x16x32_bf16 {vr(d,4)}, {vr(a_,4)}, {vr(b_,4)}, " + (c if isinstance(c, str) else vr(c, 4))


def max16(a, dst, src, extra):
    a(f"v_max3_f32 v{dst}, v{src}, v{src+1}, v{src+2}")
    for k in range(6):
        a(f"v_max3_f32 v{dst}, v{dst}, v{src+3+2*k}, v{src+4+2*k}")
    a(f"v_max3_f32 v{dst}, v{dst}, v{src+15}, v{extra}")


MAIN = "M1 e0 e1 e2 e3 M5 e4 e5 e6 e7 M6 c0 c1 c2 c3 M2 e8 e9 e10 e11 M3 e12 e13 e14 e15"
TAIL = "M4 c4 c5 c6 c7"


def attn_kernel(name, dbg="", main=MAIN, tail=TAIL, touch=True, prio=True, WS=3, KC=3, D0=1):
    a = Asm()
    a.raw(kernel_header(name))
    a(f"""
    s_cmp_ge_u32 s2, {8 if "few" in dbg else 256}
    s_cbranch_scc1 L_{name}_end
    """)
    if "stamp" in dbg:
        a("s_memrealtime s[40:41]\ns_memtime s[42:43]\ns_mov_b32 s60, 0\ns_mov_b32 s61, 0")
    T = V_T
    a(f"""
    s_load_dwordx2 s[12:13], s[0:1], 64
    s_load_dwordx2 s[36:37], s[0:1], 16
    s_load_dwordx2 s[38:39], s[0:1], 40
    v_lshrrev_b32 v1, 6, v0
    v_and_b32 v0, 63, v0
    s_and_b32 s17, s2, 7
    v_readfirstlane_b32 s16, v1
    s_lshl_b32 s17, s17, 2
    s_lshr_b32 s28, s2, 6
    s_add_u32 s17, s17, s28
    s_bfe_u32 s18, s2, 0x30003
    v_lshlrev_b32 v{V_L16}, 4, v0
    s_mov_b32 s14, {WS_SIZE}
    s_mov_b32 s15, 0x20000
    s_lshl_b32 s19, s17, 18
    s_add_u32 s19, s19, {WS_KV}
    s_lshl_b32 s28, s16, 12
    s_add_u32 s20, s19, s28
    s_mov_b32 s21, s28
    s_lshl_b32 s29, s18, 3
    s_add_u32 s29, s29, s16
    s_lshl_b32 s22, s17, 17
    s_lshl_b32 s30, s29, 11
    s_add_u32 s22, s22, s30
    s_lshl_b32 s23, s29, 16
    s_lshl_b32 s30, s17, 11
    s_add_u32 s23, s23, s30
    s_mov_b32 m0, s21
    s_add_u32 s26, s22, {WS_PQ}
    s_add_u32 s22, s22, {WS_Q}
    s_mov_b32 s27, 0
    s_waitcnt lgkmcnt(0)
    """)
    seq = []

    def vm(text, tag):
        a(text)
        seq.append(tag)

    def dma(st):
        out = []
        for k in range(4):
            out.append((f"buffer_load_dwordx4 v{V_L16}, s[12:15], s20 offen offset:{k*1024} lds", f"D{st}"))
        out[3] = (out[3][0] + f"""
            s_add_u32 s27, s27, 1
            s_add_u32 s20, s20, {SLOT}
            s_cmp_ge_u32 s27, 8
            s_cselect_b32 s20, 0x40000000, s20
            s_add_u32 s21, s21, {SLOT}
            s_and_b32 s21, s21, {NSLOT*SLOT-1}
            s_mov_b32 m0, s21
            s_nop 0""", out[3][1])
        return out

    def vmwait(tags):
        last = max(i for i, s_ in enumerate(seq) if s_ in tags)
        return len(seq) - 1 - last

    d0 = dma(0)
    for x in d0[:3]:
        vm(*x)
    for c in range(2):
        vm(f"buffer_load_dwordx4 {vr(Q+4*c,4)}, v{V_L16}, s[12:15], s22 offen offset:{c*1024}", "Q")
    vm(*d0[3])
    for x in dma(1):
        vm(*x)
    a(f"""
    v_bfe_u32 v1, v0, 4, 1
    v_lshlrev_b32 v{T}, 11, v1
    v_lshrrev_b32 v1, 5, v0
    v_lshl_add_u32 v{T}, v1, 15, v{T}
    v_and_b32 v1, 15, v0
    v_lshl_add_u32 v{T}, v1, 4, v{T}
    v_lshlrev_b32 v{T+1}, 7, v1
    s_bfe_u32 s28, s16, 0x10001
    s_and_b32 s29, s16, 1
    s_lshr_b32 s30, s16, 2
    s_lshl_b32 s24, s17, 16
    s_add_u32 s24, s24, {WS_KVP}
    s_lshl_b32 s31, s29, 10
    s_add_u32 s24, s24, s31
    s_lshl_b32 s31, s28, 9
    s_add_u32 s24, s24, s31
    s_lshl_b32 s31, s30, 8
    s_add_u32 s24, s24, s31
    s_lshl_b32 s25, s17, 11
    s_add_u32 s25, s25, {WS_ZP}
    s_lshl_b32 s31, s29, 6
    s_add_u32 s25, s25, s31
    s_lshl_b32 s31, s28, 5
    s_add_u32 s25, s25, s31
    s_lshl_b32 s31, s30, 4
    s_add_u32 s25, s25, s31
    v_mov_b32 v{V_A}, v{V_L16}
    v_add_u32 v{V_B}, {SLOT}, v{V_L16}
    s_mov_b32 s33, {SLOT}
    v_lshrrev_b32 v1, 4, v0
    v_lshrrev_b32 v{T+2}, 2, v0
    v_xor_b32 v1, v1, v{T+2}
    v_and_b32 v1, 1, v1
    v_cmp_eq_u32 vcc, 0, v1
    v_mov_b32 v1, 0x3f803f80
    v_cndmask_b32 v{SEL}, 0, v1, vcc
    v_cndmask_b32 v{SEL+1}, 0, v1, vcc
    v_cndmask_b32 v{SEL+2}, 0, v1, vcc
    v_cndmask_b32 v{SEL+3}, 0, v1, vcc
    s_and_b32 s28, s16, 3
    s_lshl_b32 s28, s28, 10
    s_lshl_b32 s31, s30, 9
    s_add_u32 s28, s28, s31
    s_add_u32 s28, s28, {LDS_B}
    v_and_b32 v1, 31, v0
    v_lshlrev_b32 v1, 4, v1
    v_add_u32 v{T+2}, s28, v1
    v_add_u32 v{T+3}, {LDS_B}, v{V_L16}
    v_lshlrev_b32 v{T+4}, 5, v0
    s_bitcmp1_b32 s2, 7
    s_cselect_b32 s8, s38, s36
    s_cselect_b32 s9, s39, s37
    s_mov_b32 s10, {2*MB}
    s_mov_b32 s11, 0x20000
    s_and_b32 s28, s2, 127
    s_lshl_b32 s28, s28, 3
    s_add_u32 s28, s28, s16
    s_lshl_b32 s32, s28, 11
    s_mov_b32 s34, 6
    """)
    for r in range(16):
        a(f"v_mov_b32 v{O+r}, 0")
    for r in range(4):
        a(f"v_mov_b32 v{L+r}, 0")
        a(f"v_mov_b32 v{P+4+r}, 0")
        a(f"v_mov_b32 v{VB[1]+4+r}, 0")
    a(f"s_waitcnt vmcnt({vmwait({'D0', 'Q'})})\ns_barrier")
    if "peel" not in dbg:
        stamp(a, 1, dbg)

    def rd(t, kind, c, dst):
        base, off = (V_A, t * 4096) if t < 8 else (V_B, (t - 8) * 4096)
        return (f"ds_read_b128 {vr(dst,4)}, v{base} offset:{off+(2048 if kind == 'V' else 0)+c*1024}", dst, 4)

    for r in [rd(0, "K", 0, KB[0]), rd(0, "K", 1, KB[0] + 4), rd(1, "K", 0, KB[1]), rd(1, "K", 1, KB[1] + 4),
              rd(0, "V", 0, VB[0]), rd(0, "V", 1, VB[0] + 4), rd(1, "V", 0, VB[1])]:
        a.ds(*r)
    a.need((KB[0], 8))
    a(mf32(S[0], KB[0], Q, "0"))
    a(mf32(S[0], KB[0] + 4, Q + 4, S[0]))
    for x in dma(2):
        vm(*x)
    for r in [rd(2, "K", 0, KB[0]), rd(2, "K", 1, KB[0] + 4)]:
        a.ds(*r)
    a.need((KB[1], 8), (VB[0], 8), (VB[1], 4))
    a(f"s_cmp_ge_u32 s16, 4\ns_cbranch_scc1 L_{name}_Y")
    if prio:
        a("s_setprio 1")

    late0 = dma(3)
    for i in range(8):
        late0.append((f"buffer_load_dwordx4 {vr(BL+4*i,4)}, v{T}, s[12:15], s24 offen" + ("\ns_add_u32 s24, s24, 4096" if i < 7 else ""), "B"))
    late0.append((f"buffer_load_dwordx4 {vr(ZL,4)}, v{T+1}, s[12:15], s25 offen", "B"))
    for c in range(2):
        late0.append((f"buffer_load_dwordx4 {vr(PQ+4*c,4)}, v{V_L16}, s[12:15], s26 offen offset:{c*1024}", "B"))
    if touch:
        late0.append((f"buffer_load_dword v{T+5}, v{T+4}, s[8:11], s32 offen", "T"))

    def emit(tok, i):
        X, Y = S[i % 2], S[(i + 1) % 2]
        Kn, Vc, Vp = KB[(i + 1) % 2], VB[i % 2], VB[(i + 1) % 2]
        k = int(tok[1:])
        if tok[0] == "e":
            a(f"v_exp_f32 v{X+k}, v{X+k}")
        elif tok[0] == "c":
            a(f"v_cvt_pk_bf16_f32 v{P+k}, v{X+2*k}, v{X+2*k+1}")
        elif tok[0] == "n":
            a(f"s_nop {k}")
        elif tok in ("M4", "M6") and "L4" in dbg:
            pb = P if tok == "M4" else P + 4
            for h in range(2):
                a(f"v_mfma_f32_4x4x4_16b_bf16 {vr(L,4)}, {vr(SEL,2)}, {vr(pb+2*h,2)}, {vr(L,4)}")
        elif tok in ("M4", "M6") and "Ldot" in dbg:
            pb = P if tok == "M4" else P + 4
            for h in range(4):
                a(f"v_dot2c_f32_bf16 v{L+h}, v{pb+h}, v{SEL}")
        elif tok in ("M4", "M6") and "Lpk" in dbg:
            xb = X + 8 if tok == "M4" else X
            for h in range(4):
                a(f"v_pk_add_f32 {vr(L+2*(h%2),2)}, {vr(L+2*(h%2),2)}, {vr(xb+2*h,2)}")
        elif tok in ("M4", "M6") and "noL" in dbg:
            pass
        elif tok in ("M1", "M2") and "S16" in dbg:
            h = 0 if tok == "M1" else 1
            a(mf16(Y + 8 * h, Kn + 4 * h, Q, "0"))
            a(mf16(Y + 8 * h + 4, Kn + 4 * h, Q + 4, "0"))
        elif tok in ("M3", "M5") and "O16" in dbg:
            h = 0 if tok == "M3" else 1
            vv = Vc if h == 0 else Vp + 4
            a(mf16(O + 8 * h, vv, P + 4 * h, O + 8 * h))
            a(mf16(O + 8 * h + 4, vv, P + 4 * h, O + 8 * h + 4))
        elif tok == "M1":
            a.need((Kn, 4))
            a(mf32(Y, Kn, Q, "0"))
        elif tok == "M2":
            a.need((Kn + 4, 4))
            a(mf32(Y, Kn + 4, Q + 4, Y))
        elif tok == "M3":
            a.need((Vc, 4))
            a(mf32(O, Vc, P, O))
        elif tok == "M4":
            a(mf16(L, SEL, P, L))
        elif tok == "M5":
            a.need((Vp + 4, 4))
            a(mf32(O, Vp + 4, P + 4, O))
        elif tok == "M6":
            a(mf16(L, SEL, P + 4, L))
        else:
            raise ValueError(tok)

    def bpart1():
        for st in (4, 8, 16):
            for i in range(0, 32, 2 * st):
                for r in range(4):
                    a(f"v_add_f32 v{BL+i+r}, v{BL+i+r}, v{BL+i+st+r}")
        for r in range(4):
            a(f"v_mov_b32 v{BL+4+r}, v{BL+r}")
        for sh in (1, 2, 4, 8):
            for r in range(4):
                a(f"v_add_f32_dpp v{ZL+r}, v{ZL+r}, v{ZL+r} row_ror:{sh} row_mask:0xf bank_mask:0xf")
            if sh == 1:
                for r in range(4):
                    a(f"v_permlane32_swap_b32 v{BL+r}, v{BL+4+r}")
            elif sh == 2:
                for r in range(4):
                    a(f"v_add_f32 v{BL+r}, v{BL+r}, v{BL+4+r}")
            elif sh == 4:
                a(f"v_cvt_pk_bf16_f32 v{BL+8}, v{BL}, v{BL+1}")
                a(f"v_cvt_pk_bf16_f32 v{BL+9}, v{BL+2}, v{BL+3}")
        a(f"v_cvt_pk_bf16_f32 v{BL+10}, v{ZL}, v{ZL+1}")
        a(f"v_cvt_pk_bf16_f32 v{BL+11}, v{ZL+2}, v{ZL+3}")
        a.ds(f"ds_write_b128 v{T+2}, {vr(BL+8,4)}")

    def bpart2():
        for c in range(2):
            for dd in range(2):
                w = 2 * c + dd
                a.ds(f"ds_read_b64 {vr(BF+4*c+2*dd,2)}, v{T+3} offset:{w*1024}", BF + 4 * c + 2 * dd, 2)
                a.ds(f"ds_read_b64 {vr(BF+8+4*c+2*dd,2)}, v{T+3} offset:{w*1024+8}", BF + 8 + 4 * c + 2 * dd, 2)

    NUM, DEN = BL, BL + 16

    def bpart3():
        a.need((BF, 16))
        a(mf32(NUM, BF, PQ, "0"))
        a(mf32(DEN, BF + 8, PQ, "0"))
        a(mf32(NUM, BF + 4, PQ + 4, NUM))
        a(mf32(DEN, BF + 12, PQ + 4, DEN))

    def bpart4():
        a(f"v_add_f32 v{DEN}, {hex(f32bits(1e-6))}, v{DEN}")
        a(f"v_rcp_f32 v{DEN}, v{DEN}")
        a(f"s_add_u32 s28, s23, {WS_OB}")
        for r in range(16):
            a(f"v_mul_f32 v{NUM+r}, v{NUM+r}, v{DEN}")
        for k in range(8):
            a(f"v_cvt_pk_bf16_f32 v{BF+16+k}, v{NUM+2*k}, v{NUM+2*k+1}")
        vm(f"buffer_store_dwordx4 {vr(BF+16,4)}, v{V_L16}, s[12:15], s28 offen", "S")
        vm(f"buffer_store_dwordx4 {vr(BF+20,4)}, v{V_L16}, s[12:15], s28 offen offset:1024", "S")

    def stage(st, typ, wv):
        loop = st >= 2
        late = list(late0) if st == 0 else dma(st + 3)
        if loop and "nodma" in dbg:
            late = [("s_nop 0", f"D{st+3}")] * 4
        per = 2 if st == 0 else 1
        ret = None

        def bar(i):
            if loop and "nobar" in dbg:
                return
            if loop and i == 7:
                a(f"s_cmp_eq_u32 s34, 1\ns_cbranch_scc1 L_{name}_{typ}_nb\ns_barrier")
                a.label(f"L_{name}_{typ}_nb")
            else:
                a("s_barrier")
        for i in range(8):
            mt = main.split()
            for n_, tok in enumerate(mt):
                if typ == "Y" and KC and n_ == len(mt) - KC:
                    a("s_setprio 2")
                    bar(i)
                emit(tok, i)
            if typ == "Y" and KC:
                a("s_setprio 0")
            a.lds_drain()
            if typ == "Y" and not KC:
                bar(i)
            if "nord" not in dbg:
                for r in [rd(i + 3, "K", 0, KB[(i + 1) % 2]), rd(i + 3, "K", 1, KB[(i + 1) % 2] + 4),
                          rd(i + 2, "V", 0, VB[i % 2]), rd(i + 1, "V", 1, VB[(i + 1) % 2] + 4)][(2 * (i % 2) if "half" in dbg else 0):(2 * (i % 2) + 2 if "half" in dbg else 4)]:
                    a.ds(*r)
            if i == WS:
                ret = vmwait({f"D{st+1}"})
                a(f"s_waitcnt vmcnt({ret if wv is None else wv})")
            if st == 0 or i >= D0:
                for x in late[:per]:
                    vm(*x)
                late = late[per:]
            if st == 1 and i == 5:
                bpart2()
            if i == 7:
                a(f"s_add_u32 s33, s33, {SLOT}\ns_and_b32 s33, s33, {NSLOT*SLOT-1}")
            for tok in tail.split():
                emit(tok, i)
            if st == 1 and i == 2:
                a(f"s_waitcnt vmcnt({vmwait({'B'})})")
                bpart1()
            if st == 1 and i == 6:
                bpart3()
            if st == 1 and i == 7:
                bpart4()
            if i == 7:
                a(f"v_mov_b32 v{V_A}, v{V_B}\nv_add_u32 v{V_B}, s33, v{V_L16}")
            if typ == "O":
                bar(i)
        assert not late
        return ret

    state = (list(a.ldsq), list(seq))
    for typ in ("O", "Y"):
        if typ == "Y":
            a.label(f"L_{name}_Y")
        a.ldsq, seq[:] = list(state[0]), list(state[1])
        stage(0, typ, None)
        stage(1, typ, None)
        save = (list(a.lines), list(a.ldsq), list(seq))
        wv = min(stage(st, typ, None) for st in range(2, 7))
        a.lines, a.ldsq, seq[:] = save
        q0 = list(a.ldsq)
        if "peel" in dbg:
            stamp(a, 1, dbg)
        a.label(f"L_{name}_{typ}_loop")
        stage(2, typ, wv)
        assert a.ldsq == q0, (a.ldsq, q0)
        a(f"""
        s_sub_u32 s34, s34, 1
        s_cmp_lg_u32 s34, 0
        s_cbranch_scc1 L_{name}_{typ}_loop
        """)
        if typ == "O":
            a(f"s_branch L_{name}_done")
    a.label(f"L_{name}_done")
    a(mf32(O, VB[1] + 4, P + 4, O))
    a(mf16(L, SEL, P + 4, L))
    a.ldsq = []
    a("s_waitcnt vmcnt(0) lgkmcnt(0)")
    stamp(a, 2, dbg)
    a(f"""
    v_mov_b32 v{T}, {hex(f32bits(2.0**60))}
    v_mov_b32 v{T+1}, {hex(f32bits(2.0**126))}
    v_mov_b32 v{T+2}, {hex(f32bits(2.0**-60))}
    s_add_u32 s30, s23, {WS_OA}
    s_nop 6
    """)
    a(f"v_add_f32 v1, |v{O}|, |v{O+1}|")
    for r in range(2, 16):
        a(f"v_add_f32 v1, v1, |v{O+r}|")
    a(f"""
    v_cmp_lt_f32 vcc, v{L}, v{T}
    v_cmp_lt_f32 s[28:29], v1, v{T+1}
    s_and_b64 vcc, vcc, s[28:29]
    v_cmp_gt_f32 s[28:29], v{L}, v{T+2}
    s_and_b64 vcc, vcc, s[28:29]
    s_cmp_eq_u64 vcc, -1
    """)
    if "no" not in dbg:
        a(f"s_cbranch_scc0 L_{name}_slow")
    a.label(f"L_{name}_fin")
    a(f"v_rcp_f32 v1, v{L}\ns_nop 0")
    for r in range(16):
        a(f"v_mul_f32 v{O+r}, v{O+r}, v1")
    for k in range(8):
        a(f"v_cvt_pk_bf16_f32 v{P+k}, v{O+2*k}, v{O+2*k+1}")
    a(f"buffer_store_dwordx4 {vr(P,4)}, v{V_L16}, s[12:15], s30 offen")
    a(f"buffer_store_dwordx4 {vr(P+4,4)}, v{V_L16}, s[12:15], s30 offen offset:1024")
    if "stamp" in dbg:
        stamp_out(a, int(dbg.split("stamp")[1][0]), nw_shift=3)
    a.label(f"L_{name}_end")
    a("s_endpgm")

    SS = S[0]
    a.label(f"L_{name}_slow")
    a(f"""
    s_mov_b32 s28, s19
    s_mov_b32 s29, 64
    v_mov_b32 v{T+3}, 0xff800000
    """)
    a.label(f"L_{name}_slowa")
    a(f"""
    buffer_load_dwordx4 {vr(KB[0],4)}, v{V_L16}, s[12:15], s28 offen
    buffer_load_dwordx4 {vr(KB[0]+4,4)}, v{V_L16}, s[12:15], s28 offen offset:1024
    s_waitcnt vmcnt(0)
    """)
    a(mf32(SS, KB[0], Q, "0"))
    a(mf32(SS, KB[0] + 4, Q + 4, SS))
    a("s_nop 7\ns_nop 3")
    max16(a, 1, SS, T + 3)
    a(f"""
    v_mov_b32 v{T+3}, v1
    s_add_u32 s28, s28, 4096
    s_sub_u32 s29, s29, 1
    s_cmp_lg_u32 s29, 0
    s_cbranch_scc1 L_{name}_slowa
    s_nop 1
    v_permlane32_swap_b32 v1, v{T+3}
    s_nop 1
    v_max_f32 v1, v1, v{T+3}
    """)
    for r in range(16):
        a(f"v_mul_f32 v{NEGM+r}, -1.0, v1")
    for r in range(16):
        a(f"v_mov_b32 v{O+r}, 0")
    for r in range(4):
        a(f"v_mov_b32 v{L+r}, 0")
    a("s_mov_b32 s28, s19\ns_mov_b32 s29, 64")
    a.label(f"L_{name}_slowb")
    a(f"""
    buffer_load_dwordx4 {vr(KB[0],4)}, v{V_L16}, s[12:15], s28 offen
    buffer_load_dwordx4 {vr(KB[0]+4,4)}, v{V_L16}, s[12:15], s28 offen offset:1024
    buffer_load_dwordx4 {vr(VB[0],4)}, v{V_L16}, s[12:15], s28 offen offset:2048
    buffer_load_dwordx4 {vr(VB[0]+4,4)}, v{V_L16}, s[12:15], s28 offen offset:3072
    s_waitcnt vmcnt(0)
    """)
    a(mf32(SS, KB[0], Q, NEGM))
    a(mf32(SS, KB[0] + 4, Q + 4, SS))
    a("s_nop 7\ns_nop 3")
    for k in range(16):
        a(f"v_exp_f32 v{SS+k}, v{SS+k}")
    a("s_nop 0")
    for k in range(8):
        a(f"v_cvt_pk_bf16_f32 v{P+k}, v{SS+2*k}, v{SS+2*k+1}")
    a("s_nop 1")
    a(mf32(O, VB[0], P, O))
    a(mf16(L, SEL, P, L))
    a(mf32(O, VB[0] + 4, P + 4, O))
    a(mf16(L, SEL, P + 4, L))
    a(f"""
    s_add_u32 s28, s28, 4096
    s_sub_u32 s29, s29, 1
    s_cmp_lg_u32 s29, 0
    s_cbranch_scc1 L_{name}_slowb
    s_nop 7
    s_nop 3
    s_branch L_{name}_fin
    """)
    return a.text(), kernel_desc(name, NV, NV), LDS_TOTAL
```

```python
import sys
sys.path.insert(0, "gen")
import gen, gemm2, attn3, attn4, oproj
def mk(path, k2, stamps=False, **kw):
    ks = []
    t, d, l = gemm2.qkv_kernel("qkv_kernel", dbg="stamp0" if stamps else "", rotmask=15, PH=0, xrot=0)
    ks.append(("qkv_kernel", t, d, 256, 256, l))
    t, d, l = k2.attn_kernel("attn_kernel", dbg="stamp1" if stamps else "", **kw)
    ks.append(("attn_kernel", t, d, 256, 512, l))
    t, d, l = oproj.oproj_kernel("oproj_kernel", dbg="stamp2" if stamps else "")
    ks.append(("oproj_kernel", t, d, 256, 256, l))
    gen.build(ks, path)
mk("u4.s", attn4, KC=4)
mk("u3.s", attn3)
```

```python
import math
from asmlib import *

MB = 1 << 20
WS_Q = 0
WS_KV = 4 * MB
WS_PQ = 12 * MB
WS_OA = 16 * MB
WS_OB = 20 * MB
WS_KVP = 24 * MB
WS_ZP = 26 * MB
WS_SIZE = 28 * MB

LOG2E = math.log2(math.e)
QSCALE = 32 ** -0.5 * LOG2E

V_OFFX = 2
V_OFFW = 6
V_XB = 10
V_XC = 12
V_WB = 14
V_WC = 16
V_T = 18
ACC = 32
NACC_OFF = 224
NV = 224 + 112
NX, NW = 3, 5
XSZ, WSZ = 32768, 12288
LDS_W = 0
LDS_X = NW * WSZ
LDS_TOTAL = LDS_X + NX * XSZ


def acc(rt, ct):
    return ACC + (rt * 6 + ct) * 4


def ar(b, n):
    return f"a[{b}:{b+n-1}]"


def xf(b, rt):
    return b * 56 + rt * 4


def wf(b, ct):
    return b * 56 + 32 + ct * 4


def stamp(a, k, dbg):
    if "stamp" in dbg:
        a(f"s_memtime s[{42+2*k}:{43+2*k}]")


DBGSTAMP = [False]


def stamp_out(a, slot, wave_sgpr=16, nw_shift=2):
    if DBGSTAMP[0]:
        a(f"""
        s_waitcnt vmcnt(0)
        s_memtime s[48:49]
        s_memrealtime s[50:51]
        s_load_dwordx2 s[12:13], s[0:1], 56
        s_waitcnt lgkmcnt(0)
        s_add_u32 s12, s12, {512*(2-slot)}
        s_addc_u32 s13, s13, 0
        s_mov_b32 s14, 256
        s_mov_b32 s15, 0x20000
        s_not_b32 s40, s40
        s_sub_u32 s48, s48, s46
        s_sub_u32 s46, s46, s44
        s_sub_u32 s44, s44, s42
        v_mov_b32 v2, s40
        v_mov_b32 v3, s50
        v_mov_b32 v4, s44
        v_mov_b32 v5, s46
        v_mov_b32 v6, s48
        v_mov_b32 v1, 0
        s_cmp_eq_u32 s{wave_sgpr}, 0
        s_cselect_b32 exec_lo, 1, 0
        s_mov_b32 exec_hi, 0
        """)
        for k in range(5):
            a(f"buffer_atomic_umax v{2+k}, v1, s[12:15], 0 offen offset:{slot*20+4*k} sc1")
        return
    a(f"""
    s_waitcnt vmcnt(0)
    s_memtime s[48:49]
    s_memrealtime s[50:51]
    s_waitcnt lgkmcnt(0)
    s_mov_b32 s14, {64*MB}
    v_mov_b32 v2, s40
    v_mov_b32 v3, s42
    v_mov_b32 v4, s44
    v_mov_b32 v5, s46
    v_mov_b32 v6, s48
    v_mov_b32 v7, s50
    v_mov_b32 v8, s60
    v_mov_b32 v9, s61
    s_lshl_b32 s28, s2, {nw_shift}
    s_add_u32 s28, s28, s{wave_sgpr}
    s_lshl_b32 s28, s28, 5
    s_add_u32 s28, s28, {32*MB + slot*MB}
    v_mov_b32 v1, 0
    s_mov_b32 exec_hi, 0
    s_mov_b32 exec_lo, 1
    buffer_store_dwordx4 v[2:5], v1, s[12:15], s28 offen
    buffer_store_dwordx4 v[6:9], v1, s[12:15], s28 offen offset:16
    """)


def qkv_kernel(name, dbg="", rotmask=15, BODY=4, PEEL=4, PH=2, PFD=2, xrot=2):
    a = Asm()
    a.raw(kernel_header(name))
    a(f"""
    s_cmp_ge_u32 s2, 256
    s_cbranch_scc1 L_{name}_end
    """)
    if "stamp" in dbg:
        a("s_memrealtime s[40:41]\ns_memtime s[42:43]")
    a(f"""
    s_load_dwordx4 s[20:23], s[0:1], 0
    s_load_dwordx4 s[24:27], s[0:1], 24
    s_load_dwordx2 s[12:13], s[0:1], 64
    v_lshrrev_b32 v1, 6, v0
    v_and_b32 v0, 63, v0
    s_and_b32 s28, s2, 7
    s_lshr_b32 s29, s2, 3
    v_readfirstlane_b32 s16, v1
    s_lshr_b32 s19, s28, 2
    s_bfe_u32 s17, s28, 0x10001
    s_lshl_b32 s17, s17, 2
    s_and_b32 s30, s29, 3
    s_add_u32 s17, s17, s30
    s_and_b32 s18, s28, 1
    s_lshl_b32 s18, s18, 3
    s_lshr_b32 s30, s29, 2
    s_add_u32 s18, s18, s30
    """)
    T = V_T
    a(f"""
    v_lshrrev_b32 v1, 3, v0
    s_lshl_b32 s28, s17, 8
    s_lshl_b32 s29, s16, 6
    s_add_u32 s28, s28, s29
    v_add_u32 v1, s28, v1
    v_lshlrev_b32 v1, 11, v1
    v_lshrrev_b32 v{T}, 4, v0
    v_and_b32 v{T+1}, 7, v0
    v_xor_b32 v{T+2}, v{T}, v{T+1}
    v_xor_b32 v{T+3}, 4, v{T+2}
    v_lshl_add_u32 v{V_OFFX}, v{T+2}, 4, v1
    v_lshl_add_u32 v{V_OFFX+1}, v{T+3}, 4, v1
    v_add_u32 v{V_OFFX+2}, {2*(16384-1024)}, v{V_OFFX}
    v_add_u32 v{V_OFFX+3}, {3*(16384-1024)}, v{V_OFFX+1}
    v_add_u32 v{V_OFFX+1}, {16384-1024}, v{V_OFFX+1}
    """)
    a(f"""
    v_lshrrev_b32 v1, 5, v0
    v_lshlrev_b32 v1, 2, v1
    v_bfe_u32 v{T}, v0, 2, 2
    v_add_u32 v1, v1, v{T}
    v_mul_u32_u24 v1, 6144, v1
    v_bfe_u32 v{T}, v0, 4, 1
    v_lshl_add_u32 v1, v{T}, 6, v1
    v_and_b32 v{T}, 3, v0
    v_lshlrev_b32 v{T}, 4, v{T}
    s_lshl_b32 s28, s18, 7
    s_mul_i32 s29, s16, 3
    """)
    for jj in range(3):
        a(f"""
        s_add_u32 s30, s29, {jj}
        s_lshr_b32 s31, s30, 2
        s_and_b32 s30, s30, 3
        s_and_b32 s32, s30, 1
        s_lshl_b32 s32, s32, 5
        s_mul_i32 s30, s30, {8*6144}
        s_lshl_b32 s31, s31, 11
        s_add_u32 s30, s30, s31
        s_add_u32 s30, s30, s28
        s_sub_u32 s30, s30, {jj*1024}
        v_xor_b32 v{T+1}, s32, v{T}
        v_add3_u32 v{V_OFFW+jj}, s30, v1, v{T+1}
        """)
    a(f"""
    v_and_b32 v1, 15, v0
    s_lshr_b32 s28, s16, 1
    s_lshl_b32 s28, s28, 14
    s_add_u32 s28, s28, {LDS_X}
    v_lshlrev_b32 v{T}, 7, v1
    v_add_u32 v{T}, s28, v{T}
    v_bfe_u32 v1, v0, 1, 3
    v_lshrrev_b32 v{T+1}, 4, v0
    v_xor_b32 v1, v1, v{T+1}
    v_lshl_add_u32 v{V_XB}, v1, 4, v{T}
    v_xor_b32 v1, 4, v1
    v_lshl_add_u32 v{V_XB+1}, v1, 4, v{T}
    s_and_b32 s28, s16, 1
    s_lshl_b32 s28, s28, 8
    s_add_u32 s28, s28, {LDS_W}
    v_lshlrev_b32 v{T}, 10, v{T+1}
    v_add_u32 v{T}, s28, v{T}
    v_bfe_u32 v1, v0, 2, 2
    v_lshl_add_u32 v{T}, v1, 6, v{T}
    v_and_b32 v1, 3, v0
    v_lshl_add_u32 v{T}, v1, 3, v{T}
    v_bfe_u32 v1, v0, 4, 1
    v_lshl_add_u32 v{V_WB}, v1, 5, v{T}
    v_xor_b32 v{V_WB+1}, 32, v{V_WB}
    s_lshl_b32 s30, s16, 13
    s_add_u32 s30, s30, {LDS_X}
    s_mul_i32 s31, s16, 3072
    s_add_u32 s31, s31, {LDS_W}
    s_waitcnt lgkmcnt(0)
    s_cmp_eq_u32 s19, 0
    s_cselect_b32 s4, s20, s24
    s_cselect_b32 s5, s21, s25
    s_cselect_b32 s8, s22, s26
    s_cselect_b32 s9, s23, s27
    s_mov_b32 s6, {4*MB}
    s_mov_b32 s7, 0x20000
    s_mov_b32 s10, {6*MB}
    s_mov_b32 s11, 0x20000
    s_mov_b32 s14, {WS_SIZE}
    s_mov_b32 s15, 0x20000
    s_mov_b32 s22, s30
    s_mov_b32 s23, s31
    s_add_u32 s33, s17, s18
    s_and_b32 s33, s33, {rotmask}
    s_and_b32 s28, s2, 7
    s_mul_i32 s28, s28, {xrot}
    s_add_u32 s33, s33, s28
    s_and_b32 s33, s33, 15
    s_lshl_b32 s20, s33, 7
    s_mul_i32 s21, s33, {64*6144}
    s_mov_b32 s34, s20
    s_add_u32 s38, s20, 65536
    s_mov_b32 s35, s21
    s_mov_b32 s36, 16
    s_mov_b32 s37, 32
    s_mov_b32 s24, 0
    s_mov_b32 s25, 0
    s_mov_b32 s26, 0
    s_mov_b32 s27, 0
    """)
    if PH:
        LX = {1: 0, 2: 1, 4: 2}[PH]
        a(f"""
        s_lshr_b32 s28, s2, 3
        s_lshl_b32 s28, s28, 2
        s_add_u32 s28, s28, s16
        s_lshl_b32 s29, s28, 3
        s_bfe_u32 s30, s2, 0x10001
        s_lshl_b32 s30, s30, 10
        s_add_u32 s29, s29, s30
        v_lshrrev_b32 v1, {LX}, v0
        v_add_u32 v1, s29, v1
        v_lshlrev_b32 v1, 11, v1
        v_and_b32 v{T}, {PH-1}, v0
        v_lshl_add_u32 v20, v{T}, 7, v1
        v_mov_b32 v1, 0x40000000
        v_cmp_gt_u32 vcc, {8*PH}, v0
        v_cndmask_b32 v20, v1, v20, vcc
        s_mul_i32 s29, s28, {PH//2}
        v_lshrrev_b32 v{T}, 3, v0
        v_mul_u32_u24 v{T+1}, 43, v{T}
        v_lshrrev_b32 v{T+1}, 7, v{T+1}
        v_mul_u32_u24 v22, 3, v{T+1}
        v_sub_u32 v{T}, v{T}, v22
        v_add_u32 v{T+1}, s29, v{T+1}
        v_mul_u32_u24 v21, 6144, v{T+1}
        v_lshl_add_u32 v21, v{T}, 11, v21
        v_and_b32 v{T}, 7, v0
        v_lshl_add_u32 v21, v{T}, 7, v21
        s_and_b32 s30, s2, 1
        s_lshl_b32 s30, s30, 10
        v_add_u32 v21, s30, v21
        v_cmp_gt_u32 vcc, {12*PH}, v0
        v_cndmask_b32 v21, v1, v21, vcc
        s_add_u32 s52, s20, {PH*128}
        s_and_b32 s52, s52, 2047
        s_add_u32 s53, s21, {PH*64*6144}
        s_cmp_ge_u32 s53, {6*MB}
        s_cselect_b32 s53, 0, s53
        s_mov_b32 s54, {16//PH - 1}
        s_mov_b32 s55, s52
        s_mov_b32 s56, s53
        """)

    def pref():
        return ["buffer_load_dword v31, v20, s[4:7], s55 offen",
                "buffer_load_dword v31, v21, s[8:11], s56 offen",
                f"""s_add_u32 s52, s52, {PH*128}
                s_and_b32 s52, s52, 2047
                s_add_u32 s53, s53, {PH*64*6144}
                s_cmp_ge_u32 s53, {6*MB}
                s_cselect_b32 s53, 0, s53
                s_sub_u32 s54, s54, 1
                s_cmp_gt_i32 s54, 0
                s_cselect_b32 s55, s52, 0x40000000
                s_cselect_b32 s56, s53, 0x40000000"""]

    def dmaX():
        out = ["s_add_u32 m0, s22, s24"]
        for jj in range(4):
            out.append(f"buffer_load_dwordx4 v{V_OFFX+jj}, s[4:7], s34 offen offset:{jj*1024} lds")
        out.append("s_add_u32 m0, m0, 4096")
        for jj in range(4):
            out.append(f"buffer_load_dwordx4 v{V_OFFX+jj}, s[4:7], s38 offen offset:{jj*1024} lds")
        out.append(f"""s_add_u32 s20, s20, 128
            s_and_b32 s20, s20, 2047
            s_sub_u32 s36, s36, 1
            s_cmp_gt_i32 s36, 0
            s_cselect_b32 s34, s20, 0x40000000
            s_add_u32 s38, s34, 65536
            s_add_u32 s24, s24, {XSZ}
            s_cmp_ge_u32 s24, {NX*XSZ}
            s_cselect_b32 s24, 0, s24""")
        return out

    def dmaW():
        out = ["s_add_u32 m0, s23, s25"]
        for jj in range(3):
            out.append(f"buffer_load_dwordx4 v{V_OFFW+jj}, s[8:11], s35 offen offset:{jj*1024} lds")
        out.append(f"""s_add_u32 s21, s21, {32*6144}
            s_cmp_ge_u32 s21, {6*MB}
            s_cselect_b32 s21, 0, s21
            s_sub_u32 s37, s37, 1
            s_cmp_gt_i32 s37, 0
            s_cselect_b32 s35, s21, 0x40000000
            s_add_u32 s25, s25, {WSZ}
            s_cmp_ge_u32 s25, {NW*WSZ}
            s_cselect_b32 s25, 0, s25""")
        return out

    abl = {"on": False}

    def emit_item(x):
        if abl["on"] and "nodma" in dbg:
            return
        if abl["on"] and "nold" in dbg and x.startswith("buffer_load"):
            return
        a(x)
        if x.startswith("s_add_u32 m0"):
            a("s_nop 0")

    seq = []
    queue = []

    def group_items(kind, idx):
        return [(x, kind, idx) for x in (dmaX() if kind == "X" else dmaW() if kind == "W" else pref())]

    def vm_for(needed):
        last = max(i for i, s in enumerate(seq) if s in needed)
        return len(seq) - 1 - last

    pro = [("X", i, 2 * i - 1) for i in range(NX)] + [("W", t, t - 1) for t in range(NW)]
    pro.sort(key=lambda z: (z[2], z[0] != "X"))
    pro = [(k, i) for k, i, _ in pro]
    NFIRST = 3
    for kind, idx in pro[:NFIRST]:
        for x, k, i in group_items(kind, idx):
            emit_item(x)
            if x.startswith("buffer_load"):
                seq.append((k, i))
    items = []
    if PH:
        for k in range(PFD):
            for x, kk, i in group_items("P", k):
                emit_item(x)
                if x.startswith("buffer_load"):
                    seq.append((kk, i))
    for kind, idx in pro[NFIRST:]:
        items += group_items(kind, idx)

    a("s_cmp_eq_u32 s19, 0\ns_cselect_b32 s28, 0, 1.0")
    for rt in range(8):
        for ct in range(6):
            for r in range(4):
                a(f"v_mov_b32 v{acc(rt,ct)+r}, " + ("s28" if ct < 4 else "0"))
    a(f"""
    v_mov_b32 v{V_XC}, v{V_XB}
    v_mov_b32 v{V_XC+1}, v{V_XB+1}
    v_mov_b32 v{V_WC}, v{V_WB}
    v_mov_b32 v{V_WC+1}, v{V_WB+1}
    """)
    a(f"s_waitcnt vmcnt({vm_for({('X',0),('W',0)})})\ns_barrier")
    stamp(a, 1, dbg)
    if "stamp" in dbg:
        a("s_waitcnt lgkmcnt(0)")

    AOFF = 1000

    def reads(t):
        b = t % 2
        u = t % 2
        X = [(f"ds_read_b128 {ar(xf(b,rt),4)}, v{V_XC+u} offset:{rt*2048}", AOFF + xf(b, rt), 4) for rt in range(8)]
        W = []
        for ct in range(6):
            seg, nh = ct // 2, ct % 2
            for tt in range(2):
                W.append((f"ds_read_b64_tr_b16 {ar(wf(b,ct)+2*tt,2)}, v{V_WC+nh} offset:{seg*4096+tt*512}", AOFF + wf(b, ct) + 2 * tt, 2))
        return [X[0]] + W + X[1:]

    def advance_read(t):
        out = [f"""s_add_u32 s27, s27, {WSZ}
            s_cmp_ge_u32 s27, {NW*WSZ}
            s_cselect_b32 s27, 0, s27
            v_add_u32 v{V_WC}, s27, v{V_WB}
            v_add_u32 v{V_WC+1}, s27, v{V_WB+1}"""]
        if t % 2 == 0:
            out.append(f"""s_add_u32 s26, s26, {XSZ}
            s_cmp_ge_u32 s26, {NX*XSZ}
            s_cselect_b32 s26, 0, s26
            v_add_u32 v{V_XC}, s26, v{V_XB}
            v_add_u32 v{V_XC+1}, s26, v{V_XB+1}""")
        return out

    for r in reads(0):
        a.ds(*r)

    def step(t, prob, vmtag, record):
        nonlocal items
        b = t % 2
        rd = reads(t + 1)
        m = 0
        BAR = 2
        for rt in range(8):
            for ct in range(6):
                a.need((AOFF + xf(b, rt), 4), (AOFF + wf(b, ct), 4))
                seg = ct // 2
                wfirst = (seg == 0) or (seg == 1 and prob == "A")
                A_, B_ = (wf(b, ct), xf(b, rt)) if wfirst else (xf(b, rt), wf(b, ct))
                if "nomfma" not in dbg:
                    a(f"v_mfma_f32_16x16x32_bf16 {vr(acc(rt,ct),4)}, {ar(A_,4)}, {ar(B_,4)}, {vr(acc(rt,ct),4)}")
                if m == 0:
                    for x in advance_read(t + 1):
                        a(x)
                if m == BAR:
                    a.lds_drain()
                    a(f"s_waitcnt vmcnt({vmtag})")
                    if not (abl["on"] and "nobar" in dbg):
                        a("s_barrier")
                    items += group_items("W", t + NW)
                    if t % 2 == 1:
                        items += group_items("X", (t - 1) // 2 + NX)
                    if PH and t % (2 * PH) == 0:
                        items += group_items("P", 100 + t)
                if m > BAR:
                    k = m - BAR - 1
                    if k % 2 == 0 and rd:
                        if abl["on"] and "nord" in dbg:
                            rd.pop(0)
                        else:
                            a.ds(*rd.pop(0))
                    elif items:
                        while items:
                            x, kk, ii = items.pop(0)
                            emit_item(x)
                            if x.startswith("buffer_load"):
                                if record:
                                    seq.append((kk, ii))
                                break
                        while items and not items[0][0].startswith("buffer_load") and not items[0][0].startswith("s_add_u32 m0"):
                            emit_item(items.pop(0)[0])
                m += 1
        assert not rd

    def needed(t):
        nd = {("W", t + 1)}
        if t % 2 == 1:
            nd.add(("X", (t + 1) // 2))
        return nd

    save = (list(a.lines), list(a.ldsq), list(items), list(seq))
    vms = []
    for t in range(32):
        vms.append(vm_for(needed(t)))
        step(t, "A", 0, True)
        if t >= PEEL - 1:
            assert not items, (t, len(items))
    a.lines, a.ldsq, items, seq = save
    state_q = list(a.ldsq)
    loopvm = [min(vms[t] for t in range(PEEL, 32) if (t - PEEL) % BODY == k) for k in range(BODY)]
    assert (32 - PEEL) % BODY == 0 and BODY % 2 == 0 and PEEL % 2 == 0 and (not PH or (BODY % (2*PH) == 0 and PEEL % (2*PH) == 0))

    a("s_cmp_lg_u32 s19, 0")
    a(f"s_cbranch_scc1 L_{name}_B")
    items0 = list(items)
    for prob in ("A", "B"):
        if prob == "B":
            a.label(f"L_{name}_B")
        items = list(items0)
        a.ldsq = list(state_q)
        for t in range(PEEL):
            step(t, prob, vms[t], False)
        a(f"s_mov_b32 s39, {(32-PEEL)//BODY}")
        a.label(f"L_{name}_loop{prob}")
        abl["on"] = True
        for k in range(BODY):
            step(PEEL + k, prob, loopvm[k], False)
        abl["on"] = False
        a(f"""
        s_sub_u32 s39, s39, 1
        s_cmp_lg_u32 s39, 0
        s_cbranch_scc1 L_{name}_loop{prob}
        """)
        a.ldsq = []
        a("s_waitcnt vmcnt(0) lgkmcnt(0)\ns_nop 7")
        stamp(a, 2, dbg)
        epilogue(a, prob)
        if prob == "A":
            a(f"s_branch L_{name}_fin")
    a.label(f"L_{name}_fin")
    if "stamp" in dbg:
        stamp_out(a, int(dbg.split("stamp")[1][0]))
    a.label(f"L_{name}_end")
    a("s_endpgm")
    return a.text(), kernel_desc(name, NV, NACC_OFF), LDS_TOTAL


def epilogue(a, prob):
    a(f"""
    s_and_b32 s28, s16, 1
    s_lshl_b32 s29, s18, 1
    s_add_u32 s28, s28, s29
    s_lshr_b32 s29, s16, 1
    s_lshl_b32 s29, s29, 2
    s_lshl_b32 s30, s17, 3
    s_add_u32 s29, s29, s30
    v_lshrrev_b32 v1, 4, v0
    v_lshlrev_b32 v1, 9, v1
    v_and_b32 v2, 15, v0
    v_lshl_add_u32 v4, v2, 4, v1
    v_and_b32 v2, 7, v0
    v_lshl_add_u32 v5, v2, 4, v1
    v_bfe_u32 v2, v0, 3, 1
    v_lshl_add_u32 v5, v2, 8, v5
    """)
    TB = 8
    n = 0

    def pack(dst, t0, t1):
        a(f"v_cvt_pk_bf16_f32 v{dst}, v{t0}, v{t0+1}")
        a(f"v_cvt_pk_bf16_f32 v{dst+1}, v{t0+2}, v{t0+3}")
        a(f"v_cvt_pk_bf16_f32 v{dst+2}, v{t1}, v{t1+1}")
        a(f"v_cvt_pk_bf16_f32 v{dst+3}, v{t1+2}, v{t1+3}")

    if prob == "A":
        a(f"""
        s_lshl_b32 s30, s28, 17
        s_lshl_b32 s31, s29, 11
        s_add_u32 s30, s30, s31
        s_add_u32 s30, s30, {WS_Q}
        s_add_u32 s31, s30, 4096
        s_lshl_b32 s32, s28, 18
        s_lshl_b32 s33, s29, 12
        s_add_u32 s32, s32, s33
        s_add_u32 s32, s32, {WS_KV}
        s_add_u32 s33, s32, 4096
        s_add_u32 s34, s32, 8192
        s_add_u32 s35, s32, 12288
        v_mov_b32 v1, {hex(f32bits(QSCALE))}
        """)
        for rt in range(8):
            tl, half = rt // 2, rt % 2
            for ct in range(2):
                for r in range(4):
                    a(f"v_mul_f32 v{acc(rt,ct)+r}, v1, v{acc(rt,ct)+r}")
            d = TB + (n % 6) * 4; n += 1
            pack(d, acc(rt, 0), acc(rt, 1))
            a(f"buffer_store_dwordx4 {vr(d,4)}, v4, s[12:15], s{30+tl//2} offen offset:{(tl%2)*2048+half*256}")
            d = TB + (n % 6) * 4; n += 1
            pack(d, acc(rt, 2), acc(rt, 3))
            a(f"buffer_store_dwordx4 {vr(d,4)}, v5, s[12:15], s{32+tl} offen offset:{half*128}")
            if half == 1:
                for dt in range(2):
                    d = TB + (n % 6) * 4; n += 1
                    pack(d, acc(rt - 1, 4 + dt), acc(rt, 4 + dt))
                    a(f"buffer_store_dwordx4 {vr(d,4)}, v4, s[12:15], s{32+tl} offen offset:{2048+dt*256}")
    else:
        a(f"""
        s_lshl_b32 s30, s28, 17
        s_lshl_b32 s31, s29, 11
        s_add_u32 s30, s30, s31
        s_add_u32 s30, s30, {WS_PQ}
        s_add_u32 s31, s30, 4096
        s_lshr_b32 s33, s29, 2
        s_lshl_b32 s32, s28, 4
        s_add_u32 s33, s33, s32
        s_lshl_b32 s32, s33, 12
        s_add_u32 s32, s32, {WS_KVP}
        s_lshl_b32 s33, s33, 7
        s_add_u32 s33, s33, {WS_ZP}
        v_mov_b32 v1, {hex(f32bits(LOG2E))}
        v_mov_b32 v2, {hex(f32bits(-LOG2E))}
        v_mov_b32 v3, {hex(f32bits(1e-6))}
        v_mov_b32 v28, 0x3f803f80
        v_mov_b32 v29, 0x3f803f80
        v_mov_b32 v30, 0x3f803f80
        v_mov_b32 v31, 0x3f803f80
        """)

        def phi(base):
            for r in range(4):
                a(f"v_fma_f32 v{24+r}, v{base+r}, v1, v2")
            for r in range(4):
                a(f"v_exp_f32 v{24+r}, v{24+r} clamp")
            for r in range(4):
                a(f"v_max_f32 v{base+r}, v{base+r}, v{24+r}")
            for r in range(4):
                a(f"v_add_f32 v{base+r}, v3, v{base+r}")
        for pr in range(4):
            r0, r1 = 2 * pr, 2 * pr + 1
            for rt in (r0, r1):
                for ct in (2, 3):
                    phi(acc(rt, ct))
            for dt in range(2):
                pack(TB + 4 * dt, acc(r0, 2 + dt), acc(r1, 2 + dt))
                pack(TB + 8 + 4 * dt, acc(r0, 4 + dt), acc(r1, 4 + dt))
            a("s_nop 1")
            for de in range(2):
                for dd in range(2):
                    dst = ar((de * 2 + dd) * 4, 4)
                    a(f"v_mfma_f32_16x16x32_bf16 {dst}, {vr(TB+4*dd,4)}, {vr(TB+8+4*de,4)}, " + ("0" if pr == 0 else dst))
            for dd in range(2):
                dst = ar(16 + dd * 4, 4)
                a(f"v_mfma_f32_16x16x32_bf16 {dst}, v[28:31], {vr(TB+4*dd,4)}, " + ("0" if pr == 0 else dst))
            for rt in (r0, r1):
                for ct in (0, 1):
                    phi(acc(rt, ct))
                d = acc(rt, 2)
                pack(d, acc(rt, 0), acc(rt, 1))
                a(f"buffer_store_dwordx4 {vr(d,4)}, v4, s[12:15], s{30+pr//2} offen offset:{(pr%2)*2048+(rt%2)*256}")
        a("v_lshlrev_b32 v6, 4, v0\nv_lshlrev_b32 v7, 2, v0")
        for k in range(4):
            a(f"buffer_store_dwordx4 {ar(4*k,4)}, v6, s[12:15], s32 offen offset:{k*1024}")
        a(f"""
        s_mov_b32 exec_hi, 0
        s_mov_b32 exec_lo, 0xffff
        buffer_store_dword a16, v7, s[12:15], s33 offen
        buffer_store_dword a20, v7, s[12:15], s33 offen offset:64
        s_mov_b64 exec, -1
        """)
```

```python
import math
from asmlib import *

MB = 1 << 20
WS_Q = 0
WS_KV = 4 * MB
WS_PQ = 12 * MB
WS_OA = 16 * MB
WS_OB = 20 * MB
WS_KVP = 24 * MB
WS_ZP = 26 * MB
WS_SIZE = 28 * MB

LOG2E = math.log2(math.e)
QSCALE = 32 ** -0.5 * LOG2E

V_OFFX = 2
V_OFFW = 6
V_XB = 10
V_XC = 12
V_WB = 14
V_WC = 16
V_T = 18
ACC = 32
NACC_OFF = 224
NV = 224 + 112
NX, NW = 3, 5
XSZ, WSZ = 32768, 12288
LDS_W = 0
LDS_X = NW * WSZ
LDS_TOTAL = LDS_X + NX * XSZ


def acc(rt, ct):
    return ACC + (rt * 6 + ct) * 4


def ar(b, n):
    return f"a[{b}:{b+n-1}]"


def xf(b, rt):
    return b * 56 + rt * 4


def wf(b, ct):
    return b * 56 + 32 + ct * 4


from gemm2 import stamp, stamp_out


def qkv_kernel(name, dbg="", rotmask=15, BODY=4, PEEL=4, xrot=0, NFIRST=3, L0=4, LS=6, R0=3, RS=2, BAR=2, CAP=2, LSB=2, PH=0, PFD=2, PAT=None):
    a = Asm()
    a.raw(kernel_header(name))
    a(f"""
    s_cmp_ge_u32 s2, 256
    s_cbranch_scc1 L_{name}_end
    """)
    if "stamp" in dbg:
        a("s_memrealtime s[40:41]\ns_memtime s[42:43]")
    a(f"""
    s_load_dwordx4 s[20:23], s[0:1], 0
    s_load_dwordx4 s[24:27], s[0:1], 24
    s_load_dwordx2 s[12:13], s[0:1], 64
    v_lshrrev_b32 v1, 6, v0
    v_and_b32 v0, 63, v0
    s_and_b32 s28, s2, 7
    s_lshr_b32 s29, s2, 3
    v_readfirstlane_b32 s16, v1
    s_lshr_b32 s19, s28, 2
    s_bfe_u32 s17, s28, 0x10001
    s_lshl_b32 s17, s17, 2
    s_and_b32 s30, s29, 3
    s_add_u32 s17, s17, s30
    s_and_b32 s18, s28, 1
    s_lshl_b32 s18, s18, 3
    s_lshr_b32 s30, s29, 2
    s_add_u32 s18, s18, s30
    """)
    T = V_T
    a(f"""
    v_lshrrev_b32 v1, 3, v0
    s_lshl_b32 s28, s17, 8
    s_lshl_b32 s29, s16, 6
    s_add_u32 s28, s28, s29
    v_add_u32 v1, s28, v1
    v_lshlrev_b32 v1, 11, v1
    v_lshrrev_b32 v{T}, 4, v0
    v_and_b32 v{T+1}, 7, v0
    v_xor_b32 v{T+2}, v{T}, v{T+1}
    v_xor_b32 v{T+3}, 4, v{T+2}
    v_lshl_add_u32 v{V_OFFX}, v{T+2}, 4, v1
    v_lshl_add_u32 v{V_OFFX+1}, v{T+3}, 4, v1
    v_add_u32 v{V_OFFX+2}, {2*(16384-1024)}, v{V_OFFX}
    v_add_u32 v{V_OFFX+3}, {3*(16384-1024)}, v{V_OFFX+1}
    v_add_u32 v{V_OFFX+1}, {16384-1024}, v{V_OFFX+1}
    """)
    a(f"""
    v_lshrrev_b32 v1, 5, v0
    v_lshlrev_b32 v1, 2, v1
    v_bfe_u32 v{T}, v0, 2, 2
    v_add_u32 v1, v1, v{T}
    v_mul_u32_u24 v1, 6144, v1
    v_bfe_u32 v{T}, v0, 4, 1
    v_lshl_add_u32 v1, v{T}, 6, v1
    v_and_b32 v{T}, 3, v0
    v_lshlrev_b32 v{T}, 4, v{T}
    s_lshl_b32 s28, s18, 7
    s_mul_i32 s29, s16, 3
    """)
    for jj in range(3):
        a(f"""
        s_add_u32 s30, s29, {jj}
        s_lshr_b32 s31, s30, 2
        s_and_b32 s30, s30, 3
        s_and_b32 s32, s30, 1
        s_lshl_b32 s32, s32, 5
        s_mul_i32 s30, s30, {8*6144}
        s_lshl_b32 s31, s31, 11
        s_add_u32 s30, s30, s31
        s_add_u32 s30, s30, s28
        s_sub_u32 s30, s30, {jj*1024}
        v_xor_b32 v{T+1}, s32, v{T}
        v_add3_u32 v{V_OFFW+jj}, s30, v1, v{T+1}
        """)
    a(f"""
    v_and_b32 v1, 15, v0
    s_lshr_b32 s28, s16, 1
    s_lshl_b32 s28, s28, 14
    s_add_u32 s28, s28, {LDS_X}
    v_lshlrev_b32 v{T}, 7, v1
    v_add_u32 v{T}, s28, v{T}
    v_bfe_u32 v1, v0, 1, 3
    v_lshrrev_b32 v{T+1}, 4, v0
    v_xor_b32 v1, v1, v{T+1}
    v_lshl_add_u32 v{V_XB}, v1, 4, v{T}
    v_xor_b32 v1, 4, v1
    v_lshl_add_u32 v{V_XB+1}, v1, 4, v{T}
    s_and_b32 s28, s16, 1
    s_lshl_b32 s28, s28, 8
    s_add_u32 s28, s28, {LDS_W}
    v_lshlrev_b32 v{T}, 10, v{T+1}
    v_add_u32 v{T}, s28, v{T}
    v_bfe_u32 v1, v0, 2, 2
    v_lshl_add_u32 v{T}, v1, 6, v{T}
    v_and_b32 v1, 3, v0
    v_lshl_add_u32 v{T}, v1, 3, v{T}
    v_bfe_u32 v1, v0, 4, 1
    v_lshl_add_u32 v{V_WB}, v1, 5, v{T}
    v_xor_b32 v{V_WB+1}, 32, v{V_WB}
    s_lshl_b32 s30, s16, 13
    s_add_u32 s30, s30, {LDS_X}
    s_mul_i32 s31, s16, 3072
    s_add_u32 s31, s31, {LDS_W}
    s_waitcnt lgkmcnt(0)
    {"s_memtime s[52:53]" if "stamp" in dbg else ""}
    s_cmp_eq_u32 s19, 0
    s_cselect_b32 s4, s20, s24
    s_cselect_b32 s5, s21, s25
    s_cselect_b32 s8, s22, s26
    s_cselect_b32 s9, s23, s27
    s_mov_b32 s6, {4*MB}
    s_mov_b32 s7, 0x20000
    s_mov_b32 s10, {6*MB}
    s_mov_b32 s11, 0x20000
    s_mov_b32 s14, {WS_SIZE}
    s_mov_b32 s15, 0x20000
    s_mov_b32 s22, s30
    s_mov_b32 s23, s31
    s_add_u32 s33, s17, s18
    s_and_b32 s33, s33, {rotmask}
    s_and_b32 s28, s2, 7
    s_mul_i32 s28, s28, {xrot}
    s_add_u32 s33, s33, s28
    s_and_b32 s33, s33, 15
    s_lshl_b32 s20, s33, 7
    s_mul_i32 s21, s33, {64*6144}
    s_mov_b32 s34, s20
    s_add_u32 s38, s20, 65536
    s_mov_b32 s35, s21
    s_mov_b32 s36, 16
    s_mov_b32 s37, 32
    s_mov_b32 s24, 0
    s_mov_b32 s25, 0
    s_mov_b32 s26, 0
    s_mov_b32 s27, 0
    """)
    a("s_add_u32 s57, s22, 4096")
    if PH:
        LX = {1: 0, 2: 1, 4: 2}[PH]
        a(f"""
        s_lshr_b32 s28, s2, 3
        s_lshl_b32 s28, s28, 2
        s_add_u32 s28, s28, s16
        s_lshl_b32 s29, s28, 3
        s_bfe_u32 s30, s2, 0x10001
        s_lshl_b32 s30, s30, 10
        s_add_u32 s29, s29, s30
        v_lshrrev_b32 v1, {LX}, v0
        v_add_u32 v1, s29, v1
        v_lshlrev_b32 v1, 11, v1
        v_and_b32 v{T}, {PH-1}, v0
        v_lshl_add_u32 v20, v{T}, 7, v1
        v_mov_b32 v1, 0x40000000
        v_cmp_gt_u32 vcc, {8*PH}, v0
        v_cndmask_b32 v20, v1, v20, vcc
        s_mul_i32 s29, s28, {PH//2}
        v_lshrrev_b32 v{T}, 3, v0
        v_mul_u32_u24 v{T+1}, 43, v{T}
        v_lshrrev_b32 v{T+1}, 7, v{T+1}
        v_mul_u32_u24 v22, 3, v{T+1}
        v_sub_u32 v{T}, v{T}, v22
        v_add_u32 v{T+1}, s29, v{T+1}
        v_mul_u32_u24 v21, 6144, v{T+1}
        v_lshl_add_u32 v21, v{T}, 11, v21
        v_and_b32 v{T}, 7, v0
        v_lshl_add_u32 v21, v{T}, 7, v21
        s_and_b32 s30, s2, 1
        s_lshl_b32 s30, s30, 10
        v_add_u32 v21, s30, v21
        v_cmp_gt_u32 vcc, {12*PH}, v0
        v_cndmask_b32 v21, v1, v21, vcc
        s_add_u32 s62, s20, {PH*128}
        s_and_b32 s62, s62, 2047
        s_add_u32 s63, s21, {PH*64*6144}
        s_cmp_ge_u32 s63, {6*MB}
        s_cselect_b32 s63, 0, s63
        s_mov_b32 s64, {16//PH - 1}
        s_mov_b32 s65, s62
        s_mov_b32 s66, s63
        """)


    def sal(text):
        return [("s", l.strip()) for l in text.strip().split("\n")]

    def dmaXA():
        out = [("m0", "s_add_u32 m0, s22, s24")]
        for jj in range(4):
            out.append(("ld", f"buffer_load_dwordx4 v{V_OFFX+jj}, s[4:7], s34 offen offset:{jj*1024} lds"))
        return out

    def dmaXB():
        ld = [("ld", f"buffer_load_dwordx4 v{V_OFFX+jj}, s[4:7], s38 offen offset:{jj*1024} lds") for jj in range(4)]
        return ([("m0", "s_add_u32 m0, s57, s24"), ld[0]]
                + sal(f"""s_add_u32 s24, s24, {XSZ}
                s_cmp_ge_u32 s24, {NX*XSZ};s_cselect_b32 s24, 0, s24""") + [ld[1]]
                + sal(f"""s_add_u32 s20, s20, 128
                s_and_b32 s20, s20, 2047
                s_sub_u32 s36, s36, 1""") + [ld[2]]
                + sal("s_cmp_gt_i32 s36, 0;s_cselect_b32 s34, s20, 0x40000000") + [ld[3]]
                + sal("s_add_u32 s38, s34, 65536"))

    def dmaW():
        ld = [("ld", f"buffer_load_dwordx4 v{V_OFFW+jj}, s[8:11], s35 offen offset:{jj*1024} lds") for jj in range(3)]
        return ([("m0", "s_add_u32 m0, s23, s25"), ld[0]]
                + sal(f"""s_add_u32 s25, s25, {WSZ}
                s_cmp_ge_u32 s25, {NW*WSZ};s_cselect_b32 s25, 0, s25""") + [ld[1]]
                + sal(f"""s_add_u32 s21, s21, {32*6144}
                s_cmp_ge_u32 s21, {6*MB};s_cselect_b32 s21, 0, s21
                s_sub_u32 s37, s37, 1""") + [ld[2]]
                + sal("s_cmp_gt_i32 s37, 0;s_cselect_b32 s35, s21, 0x40000000"))

    def pref():
        return ([("ld", "buffer_load_dword v31, v20, s[4:7], s65 offen"),
                 ("ld", "buffer_load_dword v31, v21, s[8:11], s66 offen")]
                + sal(f"""s_add_u32 s62, s62, {PH*128}
                s_and_b32 s62, s62, 2047
                s_add_u32 s63, s63, {PH*64*6144}
                s_cmp_ge_u32 s63, {6*MB};s_cselect_b32 s63, 0, s63
                s_sub_u32 s64, s64, 1
                s_cmp_gt_i32 s64, 0;s_cselect_b32 s65, s62, 0x40000000;s_cselect_b32 s66, s63, 0x40000000"""))

    abl = {"on": False}
    seq = []

    def emit_atom(at, record=True):
        k, x, tag = at
        if k == "ld":
            if a.lines[-1].strip().startswith("s_add_u32 m0"):
                a("s_nop 0")
            if record:
                seq.append(tag)
            if abl["on"] and ("nodma" in dbg or "nold" in dbg):
                return
        elif abl["on"] and "nodma" in dbg:
            return
        a(x.replace(";", "\n"))

    def group(kind, idx):
        g = {"XA": dmaXA, "XB": dmaXB, "W": dmaW, "P": pref}[kind]()
        return [(k, x, (kind[0], idx)) for k, x in g]

    def vm_for(needed):
        last = max(i for i, s in enumerate(seq) if s in needed)
        return len(seq) - 1 - last

    pro = [("X", i, 2 * i - 1) for i in range(NX)] + [("W", t, t - 1) for t in range(NW)]
    pro.sort(key=lambda z: (z[2], z[0] != "X"))
    pro = [(k, i) for k, i, _ in pro]

    def pgroup(kind, idx):
        return group("XA", idx) + group("XB", idx) if kind == "X" else group("W", idx)
    for kind, idx in pro[:NFIRST]:
        for at in pgroup(kind, idx):
            emit_atom(at)
    items = []
    if PH:
        for k in range(PFD):
            for at in group("P", k):
                emit_atom(at)
    for kind, idx in pro[NFIRST:]:
        items += pgroup(kind, idx)

    a(f"""
    v_mov_b32 v{V_XC}, v{V_XB}
    v_mov_b32 v{V_XC+1}, v{V_XB+1}
    v_mov_b32 v{V_WC}, v{V_WB}
    v_mov_b32 v{V_WC+1}, v{V_WB+1}
    """)
    if "stamp" in dbg:
        a("s_memtime s[54:55]")
    a(f"s_waitcnt vmcnt({vm_for({('X',0),('W',0)})})\ns_barrier")
    stamp(a, 1, dbg)
    if "stamp" in dbg:
        a("s_waitcnt lgkmcnt(0)\ns_sub_u32 s60, s52, s42\ns_sub_u32 s61, s54, s42")

    AOFF = 1000

    def reads(t):
        b = t % 2
        u = t % 2
        X = [(f"ds_read_b128 {ar(xf(b,rt),4)}, v{V_XC+u} offset:{rt*2048}", AOFF + xf(b, rt), 4) for rt in range(8)]
        W = []
        for ct in range(6):
            seg, nh = ct // 2, ct % 2
            for tt in range(2):
                W.append((f"ds_read_b64_tr_b16 {ar(wf(b,ct)+2*tt,2)}, v{V_WC+nh} offset:{seg*4096+tt*512}", AOFF + wf(b, ct) + 2 * tt, 2))
        return [X[0]] + W + X[1:]

    def advance_read(t):
        out = [f"s_add_u32 s27, s27, {WSZ}",
               f"s_cmp_ge_u32 s27, {NW*WSZ};s_cselect_b32 s27, 0, s27",
               f"v_add_u32 v{V_WC}, s27, v{V_WB};v_add_u32 v{V_WC+1}, s27, v{V_WB+1}"]
        if t % 2 == 0:
            out += [f"s_add_u32 s26, s26, {XSZ}",
                    f"s_cmp_ge_u32 s26, {NX*XSZ};s_cselect_b32 s26, 0, s26",
                    f"v_add_u32 v{V_XC}, s26, v{V_XB};v_add_u32 v{V_XC+1}, s26, v{V_XB+1}"]
        return out

    for r in reads(0):
        a.ds(*r)
    for x in advance_read(1):
        a(x.replace(";", "\n"))

    def step(t, prob, vmtag, record, last=None):
        nonlocal items
        b = t % 2
        rd = reads(t + 1)
        adv = advance_read(t + 2)
        advs = [x for x in adv if x.startswith("s_")]
        adv = [x for x in adv if x.startswith("v_")]
        m = 0
        nextld = L0
        for rt in range(8):
            for ct in range(6):
                a.need((AOFF + xf(b, rt), 4), (AOFF + wf(b, ct), 4))
                seg = ct // 2
                wfirst = (seg == 0) or (seg == 1 and prob == "A")
                A_, B_ = (wf(b, ct), xf(b, rt)) if wfirst else (xf(b, rt), wf(b, ct))
                c = vr(acc(rt, ct), 4)
                if t == 0:
                    c = "1.0" if (prob == "B" and ct < 4) else "0"
                if "nomfma" not in dbg:
                    a(f"v_mfma_f32_16x16x32_bf16 {vr(acc(rt,ct),4)}, {ar(A_,4)}, {ar(B_,4)}, {c}")
                n = 0
                if m < BAR:
                    for x in advs[2 * m:2 * m + 2]:
                        a(x.replace(";", "\n"))
                if m == BAR:
                    a.lds_drain()
                    a(f"s_waitcnt vmcnt({vmtag})")
                    if not (abl["on"] and "nobar" in dbg):
                        a("s_barrier")
                    items += group("W", t + NW)
                    if t % 2 == 1:
                        items += group("XA", (t - 1) // 2 + NX)
                    elif t >= 2:
                        items += group("XB", (t - 2) // 2 + NX)
                    if PH and t % (2 * PH) == 0:
                        items = group("P", 100 + t) + items if PAT == "first" else items + group("P", 100 + t)
                    nld = sum(1 for z in items if z[0] == "ld")
                    stride = LS if nld <= 7 else 4 if nld <= 9 else LSB
                elif m > BAR:
                    if m >= R0 and (m - R0) % RS == 0 and rd:
                        r = rd.pop(0)
                        if not (abl["on"] and "nord" in dbg):
                            a.ds(*r)
                        n += 1
                    elif not rd and adv:
                        x = adv.pop(0)
                        a(x.replace(";", "\n"))
                        n += x.count(";") + 1
                    while items and n < CAP:
                        k, x, tag = items[0]
                        if k == "ld":
                            if m < nextld:
                                break
                            nextld = m + stride
                            n += 1
                        elif n + x.count(";") + 1 > CAP and n > 0:
                            break
                        n += x.count(";") + 1
                        emit_atom(items.pop(0), record)
                if m == 47 and last:
                    a(last)
                m += 1
        assert not rd and not adv, (len(rd), len(adv))

    def needed(t):
        nd = {("W", t + 1)}
        if t % 2 == 1:
            nd.add(("X", (t + 1) // 2))
        return nd

    save = (list(a.lines), list(a.ldsq), list(items), list(seq))
    vms = []
    for t in range(32):
        vms.append(vm_for(needed(t)))
        step(t, "A", 0, True)
        if t >= PEEL - 1:
            assert not items, (t, len(items))
    a.lines, a.ldsq, items, seq = save
    state_q = list(a.ldsq)
    loopvm = [min(vms[t] for t in range(PEEL, 32) if (t - PEEL) % BODY == k) for k in range(BODY)]
    assert (32 - PEEL) % BODY == 0 and BODY % 2 == 0 and PEEL % 2 == 0 and (not PH or (BODY % (2*PH) == 0 and PEEL % (2*PH) == 0))

    a("s_cmp_lg_u32 s19, 0")
    a(f"s_cbranch_scc1 L_{name}_B")
    items0 = list(items)
    for prob in ("A", "B"):
        if prob == "B":
            a.label(f"L_{name}_B")
        items = list(items0)
        a.ldsq = list(state_q)
        for t in range(PEEL):
            step(t, prob, vms[t], False)
        a(f"s_mov_b32 s39, {(32-PEEL)//BODY}")
        a.label(f"L_{name}_loop{prob}")
        abl["on"] = True
        for k in range(BODY):
            step(PEEL + k, prob, loopvm[k], False, last="s_sub_u32 s39, s39, 1\ns_cmp_lg_u32 s39, 0" if k == BODY - 1 else None)
        abl["on"] = False
        a(f"s_cbranch_scc1 L_{name}_loop{prob}")
        a.ldsq = []
        a("s_waitcnt vmcnt(0) lgkmcnt(0)\ns_nop 7")
        stamp(a, 2, dbg)
        epilogue(a, prob)
        if prob == "A":
            a(f"s_branch L_{name}_fin")
    a.label(f"L_{name}_fin")
    if "stamp" in dbg:
        stamp_out(a, int(dbg.split("stamp")[1][0]))
    a.label(f"L_{name}_end")
    a("s_endpgm")
    return a.text(), kernel_desc(name, NV, NACC_OFF), LDS_TOTAL


def epilogue(a, prob):
    a(f"""
    s_and_b32 s28, s16, 1
    s_lshl_b32 s29, s18, 1
    s_add_u32 s28, s28, s29
    s_lshr_b32 s29, s16, 1
    s_lshl_b32 s29, s29, 2
    s_lshl_b32 s30, s17, 3
    s_add_u32 s29, s29, s30
    v_lshrrev_b32 v1, 4, v0
    v_lshlrev_b32 v1, 9, v1
    v_and_b32 v2, 15, v0
    v_lshl_add_u32 v4, v2, 4, v1
    v_and_b32 v2, 7, v0
    v_lshl_add_u32 v5, v2, 4, v1
    v_bfe_u32 v2, v0, 3, 1
    v_lshl_add_u32 v5, v2, 8, v5
    """)
    TB = 8
    n = 0

    def pack(dst, t0, t1):
        a(f"v_cvt_pk_bf16_f32 v{dst}, v{t0}, v{t0+1}")
        a(f"v_cvt_pk_bf16_f32 v{dst+1}, v{t0+2}, v{t0+3}")
        a(f"v_cvt_pk_bf16_f32 v{dst+2}, v{t1}, v{t1+1}")
        a(f"v_cvt_pk_bf16_f32 v{dst+3}, v{t1+2}, v{t1+3}")

    if prob == "A":
        a(f"""
        s_lshl_b32 s30, s28, 17
        s_lshl_b32 s31, s29, 11
        s_add_u32 s30, s30, s31
        s_add_u32 s30, s30, {WS_Q}
        s_add_u32 s31, s30, 4096
        s_lshl_b32 s32, s28, 18
        s_lshl_b32 s33, s29, 12
        s_add_u32 s32, s32, s33
        s_add_u32 s32, s32, {WS_KV}
        s_add_u32 s33, s32, 4096
        s_add_u32 s34, s32, 8192
        s_add_u32 s35, s32, 12288
        v_mov_b32 v1, {hex(f32bits(QSCALE))}
        """)
        for rt in range(8):
            tl, half = rt // 2, rt % 2
            for ct in range(2):
                for r in range(4):
                    a(f"v_mul_f32 v{acc(rt,ct)+r}, v1, v{acc(rt,ct)+r}")
            d = TB + (n % 6) * 4; n += 1
            pack(d, acc(rt, 0), acc(rt, 1))
            a(f"buffer_store_dwordx4 {vr(d,4)}, v4, s[12:15], s{30+tl//2} offen offset:{(tl%2)*2048+half*256}")
            d = TB + (n % 6) * 4; n += 1
            pack(d, acc(rt, 2), acc(rt, 3))
            a(f"buffer_store_dwordx4 {vr(d,4)}, v5, s[12:15], s{32+tl} offen offset:{half*128}")
            if half == 1:
                for dt in range(2):
                    d = TB + (n % 6) * 4; n += 1
                    pack(d, acc(rt - 1, 4 + dt), acc(rt, 4 + dt))
                    a(f"buffer_store_dwordx4 {vr(d,4)}, v4, s[12:15], s{32+tl} offen offset:{2048+dt*256}")
    else:
        a(f"""
        s_lshl_b32 s30, s28, 17
        s_lshl_b32 s31, s29, 11
        s_add_u32 s30, s30, s31
        s_add_u32 s30, s30, {WS_PQ}
        s_add_u32 s31, s30, 4096
        s_lshr_b32 s33, s29, 2
        s_lshl_b32 s32, s28, 4
        s_add_u32 s33, s33, s32
        s_lshl_b32 s32, s33, 12
        s_add_u32 s32, s32, {WS_KVP}
        s_lshl_b32 s33, s33, 7
        s_add_u32 s33, s33, {WS_ZP}
        v_mov_b32 v1, {hex(f32bits(LOG2E))}
        v_mov_b32 v2, {hex(f32bits(-LOG2E))}
        v_mov_b32 v3, {hex(f32bits(1e-6))}
        v_mov_b32 v28, 0x3f803f80
        v_mov_b32 v29, 0x3f803f80
        v_mov_b32 v30, 0x3f803f80
        v_mov_b32 v31, 0x3f803f80
        """)

        def phi(base):
            for r in range(4):
                a(f"v_fma_f32 v{24+r}, v{base+r}, v1, v2")
            for r in range(4):
                a(f"v_exp_f32 v{24+r}, v{24+r} clamp")
            for r in range(4):
                a(f"v_max_f32 v{base+r}, v{base+r}, v{24+r}")
            for r in range(4):
                a(f"v_add_f32 v{base+r}, v3, v{base+r}")
        for pr in range(4):
            r0, r1 = 2 * pr, 2 * pr + 1
            for rt in (r0, r1):
                for ct in (2, 3):
                    phi(acc(rt, ct))
            for dt in range(2):
                pack(TB + 4 * dt, acc(r0, 2 + dt), acc(r1, 2 + dt))
                pack(TB + 8 + 4 * dt, acc(r0, 4 + dt), acc(r1, 4 + dt))
            a("s_nop 1")
            for de in range(2):
                for dd in range(2):
                    dst = ar((de * 2 + dd) * 4, 4)
                    a(f"v_mfma_f32_16x16x32_bf16 {dst}, {vr(TB+4*dd,4)}, {vr(TB+8+4*de,4)}, " + ("0" if pr == 0 else dst))
            for dd in range(2):
                dst = ar(16 + dd * 4, 4)
                a(f"v_mfma_f32_16x16x32_bf16 {dst}, v[28:31], {vr(TB+4*dd,4)}, " + ("0" if pr == 0 else dst))
            for rt in (r0, r1):
                for ct in (0, 1):
                    phi(acc(rt, ct))
                d = acc(rt, 2)
                pack(d, acc(rt, 0), acc(rt, 1))
                a(f"buffer_store_dwordx4 {vr(d,4)}, v4, s[12:15], s{30+pr//2} offen offset:{(pr%2)*2048+(rt%2)*256}")
        a("v_lshlrev_b32 v6, 4, v0\nv_lshlrev_b32 v7, 2, v0")
        for k in range(4):
            a(f"buffer_store_dwordx4 {ar(4*k,4)}, v6, s[12:15], s32 offen offset:{k*1024}")
        a(f"""
        s_mov_b32 exec_hi, 0
        s_mov_b32 exec_lo, 0xffff
        buffer_store_dword a16, v7, s[12:15], s33 offen
        buffer_store_dword a20, v7, s[12:15], s33 offen offset:64
        s_mov_b64 exec, -1
        """)
```

```python
import sys
sys.path.insert(0, "gen")
import gen, gemm2, gemm3, attn3, attn4, oproj
def mk(path, k1kw, k2=attn3, k2kw={}, k3kw={}, stamps=False, k3=oproj):
    ks = []
    t, d, l = gemm3.qkv_kernel("qkv_kernel", dbg="stamp0" if stamps else "", **k1kw)
    ks.append(("qkv_kernel", t, d, 256, 256, l))
    t, d, l = k2.attn_kernel("attn_kernel", dbg="stamp1" if stamps else "", **k2kw)
    ks.append(("attn_kernel", t, d, 256, 512, l))
    t, d, l = k3.oproj_kernel("oproj_kernel", dbg="stamp2" if stamps else "", **k3kw)
    ks.append(("oproj_kernel", t, d, 256, 256, l))
    gen.build(ks, path)
if __name__ == "__main__":
    V = [dict(BODY=2), dict(BODY=2, rotmask=3), dict(BODY=2, rotmask=0, xrot=2), dict(BODY=2, NFIRST=5), dict(BODY=4), dict(BODY=2, rotmask=3, NFIRST=8)]
    for i, v in enumerate(V):
        mk(f"v{i+1}.s", v)
```

```python
from asmlib import *
from gemm2 import MB, WS_OA, WS_OB, WS_SIZE, stamp, stamp_out

R = 10
SLOT = 16384
LDS_TOTAL = R * SLOT

V_L16 = 2
V_OW = 3
V_RA = 5
V_RB = 11
V_T = 14
FR = 20
ACC = 84
NV = 148


def acc(mt, nt):
    return ACC + (mt * 4 + nt) * 4


def fa(b, nt):
    return FR + b * 32 + nt * 4


def fb(b, mt):
    return FR + b * 32 + 16 + mt * 4


def oproj_kernel(name, dbg="", BAR=2, NFIRST=2, U=R, LP=None, ROT=None):
    a = Asm()
    a.raw(kernel_header(name))
    a(f"""
    s_cmp_ge_u32 s2, 256
    s_cbranch_scc1 L_{name}_end
    """)
    if "stamp" in dbg:
        a("s_memrealtime s[40:41]\ns_memtime s[42:43]")
    T = V_T
    a(f"""
    s_load_dwordx2 s[20:21], s[0:1], 16
    s_load_dwordx2 s[22:23], s[0:1], 40
    s_load_dwordx2 s[4:5], s[0:1], 48
    s_load_dwordx2 s[12:13], s[0:1], 64
    v_lshrrev_b32 v1, 6, v0
    v_and_b32 v0, 63, v0
    s_bfe_u32 s19, s2, 0x10002
    v_readfirstlane_b32 s16, v1
    s_and_b32 s17, s2, 3
    s_lshl_b32 s17, s17, 2
    s_bfe_u32 s28, s2, 0x20003
    s_add_u32 s17, s17, s28
    s_lshr_b32 s18, s2, 5
    v_lshlrev_b32 v{V_L16}, 4, v0
    s_mov_b32 s14, {WS_SIZE}
    s_mov_b32 s15, 0x20000
    s_mov_b32 s10, {2*MB}
    s_mov_b32 s11, 0x20000
    s_mov_b32 s6, {8*MB}
    s_mov_b32 s7, 0x20000
    """)
    a(f"""
    s_lshl_b32 s24, s17, 2
    s_add_u32 s24, s24, s16
    s_lshl_b32 s24, s24, 16
    s_lshl_b32 s28, s19, 22
    s_add_u32 s24, s24, s28
    s_add_u32 s24, s24, {WS_OA - 2048}
    s_lshr_b32 s28, s16, 1
    s_lshl_b32 s28, s28, 4
    s_and_b32 s29, s16, 1
    s_lshl_b32 s30, s29, 2
    s_add_u32 s28, s28, s30
    s_lshl_b32 s28, s28, 11
    s_lshl_b32 s30, s18, 8
    s_add_u32 s28, s28, s30
    s_lshl_b32 s29, s29, 1
    v_bfe_u32 v1, v0, 2, 2
    v_lshlrev_b32 v1, 11, v1
    v_lshrrev_b32 v{T}, 4, v0
    v_lshl_add_u32 v1, v{T}, 6, v1
    v_and_b32 v{T}, 3, v0
    v_xor_b32 v{T}, s29, v{T}
    v_lshl_add_u32 v1, v{T}, 4, v1
    v_add_u32 v{V_OW}, s28, v1
    v_add_u32 v{V_OW+1}, {8*2048-1024}, v{V_OW}
    s_mov_b32 s25, 0
    s_lshl_b32 s26, s16, 12
    s_mov_b32 m0, s26
    """)
    if ROT:
        ra, rc, rx = ROT
        a(f"""
        s_mul_i32 s27, s17, {ra}
        s_mul_i32 s28, s18, {rc}
        s_add_u32 s27, s27, s28
        s_and_b32 s28, s2, 7
        s_mul_i32 s28, s28, {rx}
        s_add_u32 s27, s27, s28
        s_and_b32 s27, s27, 31
        s_lshl_b32 s25, s27, 16
        s_lshl_b32 s27, s27, 11
        s_mov_b32 s31, s24
        s_add_u32 s24, s31, s27
        """)
    a(f"""
    s_waitcnt lgkmcnt(0)
    s_cmp_eq_u32 s19, 0
    s_cselect_b32 s8, s20, s22
    s_cselect_b32 s9, s21, s23
    """)

    def dma(t):
        out = [f"buffer_load_dwordx4 v{V_OW}, s[8:11], s25 offen lds",
               f"buffer_load_dwordx4 v{V_OW+1}, s[8:11], s25 offen offset:1024 lds",
               f"buffer_load_dwordx4 v{V_L16}, s[12:15], s24 offen offset:2048 lds",
               f"buffer_load_dwordx4 v{V_L16}, s[12:15], s24 offen offset:3072 lds"]
        nxt = ((t + 1) % R) * SLOT
        if ROT:
            out.append(f"s_add_u32 s25, s25, 65536\ns_and_b32 s25, s25, {2*MB-1}\ns_lshr_b32 s27, s25, 5\ns_add_u32 s24, s31, s27\ns_add_u32 m0, s26, {nxt}")
        else:
            out.append(f"s_add_u32 s25, s25, 65536\ns_add_u32 s24, s24, 2048\ns_add_u32 m0, s26, {nxt}")
        return out

    seq = []
    for t in range(NFIRST):
        for x in dma(t):
            a(x)
        a("s_nop 0")
        seq += [t] * 4
    a(f"""
    v_lshrrev_b32 v1, 4, v0
    v_lshlrev_b32 v{T}, 12, v1
    v_bfe_u32 v{T+1}, v0, 2, 2
    v_lshl_add_u32 v{T}, v{T+1}, 6, v{T}
    v_and_b32 v{T+1}, 3, v0
    v_lshl_add_u32 v{T}, v{T+1}, 3, v{T}
    v_and_b32 v1, 1, v1
    v_lshl_add_u32 v{T}, v1, 5, v{T}
    s_and_b32 s28, s16, 1
    s_lshl_b32 s28, s28, 9
    v_add_u32 v{V_RA}, s28, v{T}
    v_xor_b32 v{V_RA+1}, 32, v{V_RA}
    v_add_u32 v{V_RA+2}, 0x10000, v{V_RA}
    v_add_u32 v{V_RA+3}, 0x10000, v{V_RA+1}
    v_add_u32 v{V_RA+4}, 0x20000, v{V_RA}
    v_add_u32 v{V_RA+5}, 0x20000, v{V_RA+1}
    v_lshrrev_b32 v1, 4, v0
    v_lshlrev_b32 v1, 9, v1
    v_and_b32 v{T}, 15, v0
    v_lshl_add_u32 v1, v{T}, 4, v1
    s_lshr_b32 s28, s16, 1
    s_lshl_b32 s28, s28, 13
    s_add_u32 s28, s28, 2048
    v_add_u32 v{V_RB}, s28, v1
    v_add_u32 v{V_RB+1}, 0x10000, v{V_RB}
    v_add_u32 v{V_RB+2}, 0x20000, v{V_RB}
    """)
    for t in range(NFIRST, U):
        for x in dma(t):
            a(x)
        a("s_nop 0")
        seq += [t] * 4

    def vm_for(t):
        last = max(i for i, s in enumerate(seq) if s == t)
        return len(seq) - 1 - last

    def reads(t):
        b = t % 2
        so = (t % R) * SLOT
        bank, so = so >> 16, so & 0xffff
        A_ = []
        for nt in range(4):
            for tt in range(2):
                A_.append((f"ds_read_b64_tr_b16 {vr(fa(b,nt)+2*tt,2)}, v{V_RA+2*bank+(nt&1)} offset:{so+tt*1024+(nt//2)*256}", fa(b, nt) + 2 * tt, 2))
        B_ = [(f"ds_read_b128 {vr(fb(b,mt),4)}, v{V_RB+bank} offset:{so+(mt//2)*4096+(mt&1)*256}", fb(b, mt), 4) for mt in range(4)]
        return [B_[0]] + A_ + B_[1:]

    a(f"s_waitcnt vmcnt({vm_for(0)})\ns_barrier")
    stamp(a, 1, dbg)
    if "stamp" in dbg:
        a("s_waitcnt lgkmcnt(0)")
    for r in reads(0):
        a.ds(*r)

    for t in range(32):
        b = t % 2
        rd = reads(t + 1) if t < 31 else []
        items = []
        if LP and t + U < 32:
            assert U <= R - 2
            items = dma(t + U)
        m = 0
        for mt in range(4):
            for nt in range(4):
                a.need((fa(b, nt), 4), (fb(b, mt), 4))
                a(f"v_mfma_f32_16x16x32_bf16 {vr(acc(mt,nt),4)}, {vr(fa(b,nt),4)}, {vr(fb(b,mt),4)}, " + ("0" if t == 0 else vr(acc(mt, nt), 4)))
                if m == BAR and t < 31:
                    a.lds_drain()
                    a(f"s_waitcnt vmcnt({vm_for(t+1)})\ns_barrier")
                    if not LP and t + U < 32:
                        items = dma(t + U)
                        seq += [t + U] * 4
                if LP and items and m in LP:
                    a(items.pop(0))
                    seq.append(t + U)
                    if len(items) == 1:
                        a(items.pop(0))
                if m > BAR:
                    if rd:
                        a.ds(*rd.pop(0))
                    if not LP and items and (m - BAR) % 2 == 0:
                        a(items.pop(0))
                        if len(items) == 1:
                            a(items.pop(0))
                m += 1
        assert not rd and not items
    stamp(a, 2, dbg)
    a(f"""
    v_and_b32 v1, 15, v0
    v_lshlrev_b32 v1, 12, v1
    v_bfe_u32 v{T}, v0, 4, 1
    v_lshl_add_u32 v1, v{T}, 5, v1
    v_lshrrev_b32 v{T}, 5, v0
    v_lshl_add_u32 v1, v{T}, 4, v1
    s_lshl_b32 s28, s17, 19
    s_lshr_b32 s29, s16, 1
    s_lshl_b32 s29, s29, 18
    s_add_u32 s28, s28, s29
    s_lshl_b32 s29, s19, 11
    s_add_u32 s28, s28, s29
    s_lshl_b32 s29, s18, 8
    s_add_u32 s28, s28, s29
    s_and_b32 s29, s16, 1
    s_lshl_b32 s29, s29, 7
    s_add_u32 s28, s28, s29
    """)
    n = 0
    for mt in range(4):
        for pr in range(2):
            d = FR + 4 * n
            n += 1
            x, y = acc(mt, 2 * pr), acc(mt, 2 * pr + 1)
            a(f"""
            v_cvt_pk_bf16_f32 v{d}, v{x}, v{x+1}
            v_cvt_pk_bf16_f32 v{d+1}, v{x+2}, v{x+3}
            v_cvt_pk_bf16_f32 v{d+2}, v{y}, v{y+1}
            v_cvt_pk_bf16_f32 v{d+3}, v{y+2}, v{y+3}
            s_nop 1
            v_permlane16_swap_b32 v{d}, v{d+2}
            v_permlane16_swap_b32 v{d+1}, v{d+3}
            buffer_store_dwordx4 {vr(d,4)}, v1, s[4:7], s28 offen offset:{pr*64}
            """)
        if mt < 3:
            a("s_add_u32 s28, s28, 65536")
    if "stamp" in dbg:
        stamp_out(a, int(dbg.split("stamp")[1][0]))
    a.label(f"L_{name}_end")
    a("s_endpgm")
    return a.text(), kernel_desc(name, NV, NV), LDS_TOTAL
```

```python
from asmlib import *
from gemm2 import MB, WS_OA, WS_OB, WS_SIZE, stamp, stamp_out

R = 8
SLOT = 16384
LDS_TOTAL = R * SLOT

V_L16 = 2
V_OW = 3
V_RA = 5
V_RB = 7
V_CA = 8
V_CB = 10
V_T = 14
FR = 20
ACC = 84
NV = 148


def acc(mt, nt):
    return ACC + (mt * 4 + nt) * 4


def fa(b, nt):
    return FR + b * 32 + nt * 4


def fb(b, mt):
    return FR + b * 32 + 16 + mt * 4


def oproj_kernel(name, dbg="", BAR=2, NFIRST=2, U=6, LP=(0, 4, 8, 12), BODY=2, XROT=4, DRAIN=False):
    assert U <= R - 2
    a = Asm()
    a.raw(kernel_header(name))
    a(f"""
    s_cmp_ge_u32 s2, 256
    s_cbranch_scc1 L_{name}_end
    """)
    if "stamp" in dbg:
        a("s_memrealtime s[40:41]\ns_memtime s[42:43]")
    T = V_T
    a(f"""
    s_load_dwordx2 s[20:21], s[0:1], 16
    s_load_dwordx2 s[22:23], s[0:1], 40
    s_load_dwordx2 s[4:5], s[0:1], 48
    s_load_dwordx2 s[12:13], s[0:1], 64
    v_lshrrev_b32 v1, 6, v0
    v_and_b32 v0, 63, v0
    s_bfe_u32 s19, s2, 0x10002
    v_readfirstlane_b32 s16, v1
    s_and_b32 s17, s2, 3
    s_lshl_b32 s17, s17, 2
    s_bfe_u32 s28, s2, 0x20003
    s_add_u32 s17, s17, s28
    s_lshr_b32 s18, s2, 5
    v_lshlrev_b32 v{V_L16}, 4, v0
    s_mov_b32 s14, {WS_SIZE}
    s_mov_b32 s15, 0x20000
    s_mov_b32 s10, {2*MB}
    s_mov_b32 s11, 0x20000
    s_mov_b32 s6, {8*MB}
    s_mov_b32 s7, 0x20000
    """)
    a(f"""
    s_lshl_b32 s31, s17, 2
    s_add_u32 s31, s31, s16
    s_lshl_b32 s31, s31, 16
    s_lshl_b32 s28, s19, 22
    s_add_u32 s31, s31, s28
    s_add_u32 s31, s31, {WS_OA - 2048}
    s_lshr_b32 s28, s16, 1
    s_lshl_b32 s28, s28, 4
    s_and_b32 s29, s16, 1
    s_lshl_b32 s30, s29, 2
    s_add_u32 s28, s28, s30
    s_lshl_b32 s28, s28, 11
    s_lshl_b32 s30, s18, 8
    s_add_u32 s28, s28, s30
    s_lshl_b32 s29, s29, 1
    v_bfe_u32 v1, v0, 2, 2
    v_lshlrev_b32 v1, 11, v1
    v_lshrrev_b32 v{T}, 4, v0
    v_lshl_add_u32 v1, v{T}, 6, v1
    v_and_b32 v{T}, 3, v0
    v_xor_b32 v{T}, s29, v{T}
    v_lshl_add_u32 v1, v{T}, 4, v1
    v_add_u32 v{V_OW}, s28, v1
    v_add_u32 v{V_OW+1}, {8*2048-1024}, v{V_OW}
    s_and_b32 s28, s2, 7
    s_mul_i32 s28, s28, {XROT}
    s_and_b32 s28, s28, 31
    s_lshl_b32 s33, s28, 16
    s_mov_b32 s25, s33
    s_lshl_b32 s27, s28, 11
    s_add_u32 s24, s31, s27
    s_lshl_b32 s26, s16, 12
    s_mov_b32 m0, s26
    s_mov_b32 s34, 32
    s_mov_b32 s35, 0
    s_waitcnt lgkmcnt(0)
    s_cmp_eq_u32 s19, 0
    s_cselect_b32 s8, s20, s22
    s_cselect_b32 s9, s21, s23
    """)

    def dma():
        return [("ld", f"buffer_load_dwordx4 v{V_OW}, s[8:11], s25 offen lds"),
                ("s", f"s_add_u32 s33, s33, 65536\ns_and_b32 s33, s33, {2*MB-1}"),
                ("s", f"s_lshr_b32 s27, s33, 5\ns_add_u32 s27, s31, s27"),
                ("ld", f"buffer_load_dwordx4 v{V_OW+1}, s[8:11], s25 offen offset:1024 lds"),
                ("s", f"s_add_u32 s26, s26, {SLOT}\ns_and_b32 s26, s26, {R*SLOT-1}"),
                ("s", f"s_sub_u32 s34, s34, 1"),
                ("ld", f"buffer_load_dwordx4 v{V_L16}, s[12:15], s24 offen offset:2048 lds"),
                ("ld", f"buffer_load_dwordx4 v{V_L16}, s[12:15], s24 offen offset:3072 lds"),
                ("s", f"s_cmp_gt_i32 s34, 0\ns_cselect_b32 s25, s33, 0x40000000\ns_cselect_b32 s24, s27, 0x40000000"),
                ("s", f"s_mov_b32 m0, s26")]

    for t in range(NFIRST):
        for k, x in dma():
            a(x)
        a("s_nop 0")
    a(f"""
    v_lshrrev_b32 v1, 4, v0
    v_lshlrev_b32 v{T}, 12, v1
    v_bfe_u32 v{T+1}, v0, 2, 2
    v_lshl_add_u32 v{T}, v{T+1}, 6, v{T}
    v_and_b32 v{T+1}, 3, v0
    v_lshl_add_u32 v{T}, v{T+1}, 3, v{T}
    v_and_b32 v1, 1, v1
    v_lshl_add_u32 v{T}, v1, 5, v{T}
    s_and_b32 s28, s16, 1
    s_lshl_b32 s28, s28, 9
    v_add_u32 v{V_RA}, s28, v{T}
    v_xor_b32 v{V_RA+1}, 32, v{V_RA}
    v_lshrrev_b32 v1, 4, v0
    v_lshlrev_b32 v1, 9, v1
    v_and_b32 v{T}, 15, v0
    v_lshl_add_u32 v1, v{T}, 4, v1
    s_lshr_b32 s28, s16, 1
    s_lshl_b32 s28, s28, 13
    s_add_u32 s28, s28, 2048
    v_add_u32 v{V_RB}, s28, v1
    v_mov_b32 v{V_CA}, v{V_RA}
    v_mov_b32 v{V_CA+1}, v{V_RA+1}
    v_mov_b32 v{V_CB}, v{V_RB}
    """)
    z = 0
    for t in range(NFIRST, U):
        for k, x in dma():
            a(x)
            if k == "ld":
                for _ in range(4):
                    if z < 64:
                        a(f"v_mov_b32 v{ACC+z}, 0")
                        z += 1
        a("s_nop 0")
    while z < 64:
        a(f"v_mov_b32 v{ACC+z}, 0")
        z += 1

    def reads(t):
        b = t % 2
        A_ = []
        for nt in range(4):
            for tt in range(2):
                A_.append((f"ds_read_b64_tr_b16 {vr(fa(b,nt)+2*tt,2)}, v{V_CA+(nt&1)} offset:{tt*1024+(nt//2)*256}", fa(b, nt) + 2 * tt, 2))
        B_ = [(f"ds_read_b128 {vr(fb(b,mt),4)}, v{V_CB} offset:{(mt//2)*4096+(mt&1)*256}", fb(b, mt), 4) for mt in range(4)]
        return [B_[0]] + A_ + B_[1:]

    ADV_S = f"s_add_u32 s35, s35, {SLOT}\ns_and_b32 s35, s35, {R*SLOT-1}"
    ADV_V = f"v_add_u32 v{V_CA}, s35, v{V_RA}\nv_add_u32 v{V_CA+1}, s35, v{V_RA+1}\nv_add_u32 v{V_CB}, s35, v{V_RB}"

    a(f"s_waitcnt vmcnt({4*(U-1)})\ns_barrier")
    stamp(a, 1, dbg)
    if "stamp" in dbg:
        a("s_waitcnt lgkmcnt(0)")
    for r in reads(0):
        a.ds(*r)
    a(ADV_S)
    a(ADV_V)
    a(f"s_mov_b32 s36, {32//BODY}")
    q0 = list(a.ldsq)
    a.label(f"L_{name}_loop")
    nb = sum(1 for m in LP if m <= BAR)
    for t in range(BODY):
        b = t % 2
        rd = reads(t + 1)
        items = dma()
        m = 0
        for mt in range(4):
            for nt in range(4):
                a.need((fa(b, nt), 4), (fb(b, mt), 4))
                a(f"v_mfma_f32_16x16x32_bf16 {vr(acc(mt,nt),4)}, {vr(fa(b,nt),4)}, {vr(fb(b,mt),4)}, {vr(acc(mt,nt),4)}")
                if items and (items[0][0] == "s" or m in LP) and m != BAR - 1:
                    a(items.pop(0)[1])
                if m == BAR - 1:
                    a(ADV_S)
                if m == BAR:
                    if DRAIN:
                        a.lds_drain()
                    a(f"s_waitcnt vmcnt({4*(U-2)+nb})\ns_barrier")
                if m > BAR:
                    if rd:
                        a.ds(*rd.pop(0))
                    elif m == 15:
                        a(ADV_V)
                m += 1
        assert not rd and not items, (len(rd), items)
    a(f"""
    s_sub_u32 s36, s36, 1
    s_cmp_lg_u32 s36, 0
    s_cbranch_scc1 L_{name}_loop
    """)
    assert a.ldsq == q0, (a.ldsq, q0)
    stamp(a, 2, dbg)
    a(f"""
    v_and_b32 v1, 15, v0
    v_lshlrev_b32 v1, 12, v1
    v_bfe_u32 v{T}, v0, 4, 1
    v_lshl_add_u32 v1, v{T}, 5, v1
    v_lshrrev_b32 v{T}, 5, v0
    v_lshl_add_u32 v1, v{T}, 4, v1
    s_lshl_b32 s28, s17, 19
    s_lshr_b32 s29, s16, 1
    s_lshl_b32 s29, s29, 18
    s_add_u32 s28, s28, s29
    s_lshl_b32 s29, s19, 11
    s_add_u32 s28, s28, s29
    s_lshl_b32 s29, s18, 8
    s_add_u32 s28, s28, s29
    s_and_b32 s29, s16, 1
    s_lshl_b32 s29, s29, 7
    s_add_u32 s28, s28, s29
    s_waitcnt lgkmcnt(0)
    """)
    a.ldsq = []
    n = 0
    for mt in range(4):
        for pr in range(2):
            d = FR + 4 * n
            n += 1
            x, y = acc(mt, 2 * pr), acc(mt, 2 * pr + 1)
            a(f"""
            v_cvt_pk_bf16_f32 v{d}, v{x}, v{x+1}
            v_cvt_pk_bf16_f32 v{d+1}, v{x+2}, v{x+3}
            v_cvt_pk_bf16_f32 v{d+2}, v{y}, v{y+1}
            v_cvt_pk_bf16_f32 v{d+3}, v{y+2}, v{y+3}
            s_nop 1
            v_permlane16_swap_b32 v{d}, v{d+2}
            v_permlane16_swap_b32 v{d+1}, v{d+3}
            buffer_store_dwordx4 {vr(d,4)}, v1, s[4:7], s28 offen offset:{pr*64}
            """)
        if mt < 3:
            a("s_add_u32 s28, s28, 65536")
    a("s_waitcnt vmcnt(8)")
    if "stamp" in dbg:
        stamp_out(a, int(dbg.split("stamp")[1][0]))
    a.label(f"L_{name}_end")
    a("s_endpgm")
    return a.text(), kernel_desc(name, NV, NV), LDS_TOTAL
```

```python
import sys
sys.path.insert(0, "gen")
from mk import mk
import oproj, oproj2
K1 = dict(BODY=2, NFIRST=5)
mk("w1.s", K1)
mk("w2.s", K1, k3kw=dict(U=6, LP=(0,4,8,12), ROT=(0,0,4)))
mk("w3.s", K1, k3kw=dict(U=5, LP=(0,4,8,12), ROT=(0,0,4)))
mk("w4.s", K1, k3=oproj2, k3kw=dict(U=6))
mk("w5.s", K1, k3=oproj2, k3kw=dict(U=5))
mk("w6.s", K1, k3=oproj2, k3kw=dict(U=4))
```

```python
import struct


def f32bits(x):
    return struct.unpack("<I", struct.pack("<f", x))[0]


def vr(b, n=1):
    return f"v{b}" if n == 1 else f"v[{b}:{b+n-1}]"


def sr(b, n=1):
    return f"s{b}" if n == 1 else f"s[{b}:{b+n-1}]"


class Asm:
    def __init__(self):
        self.lines = []
        self.ldsq = []

    def __call__(self, s):
        for l in s.strip("\n").split("\n"):
            self.lines.append("    " + l.strip())

    def label(self, l):
        self.lines.append(l + ":")

    def raw(self, s):
        self.lines.append(s)

    def comment(self, s):
        self.lines.append("    ; " + s)

    def ds(self, text, dst_base=None, n=0):
        self(text)
        regs = set(range(dst_base, dst_base + n)) if dst_base is not None else set()
        self.ldsq.append(regs)

    def need(self, *ranges):
        regs = set()
        for b, n in ranges:
            regs |= set(range(b, b + n))
        last = -1
        for i, q in enumerate(self.ldsq):
            if q & regs:
                last = i
        if last >= 0:
            cnt = len(self.ldsq) - 1 - last
            cnt = min(cnt, 15)
            self(f"s_waitcnt lgkmcnt({cnt})")
            self.ldsq = self.ldsq[len(self.ldsq) - cnt:] if cnt else []

    def lds_drain(self):
        if self.ldsq:
            self("s_waitcnt lgkmcnt(0)")
            self.ldsq = []

    def text(self):
        return "\n".join(self.lines) + "\n"


def kernel_header(name):
    return f""".globl {name}
.p2align 8
.type {name},@function
{name}:
"""


def kernel_desc(name, nvgpr, accum=None, nsgpr=102):
    if accum is None:
        accum = (nvgpr + 3) // 4 * 4
    return f""".amdhsa_kernel {name}
  .amdhsa_next_free_vgpr {nvgpr}
  .amdhsa_next_free_sgpr {nsgpr}
  .amdhsa_accum_offset {accum}
  .amdhsa_group_segment_fixed_size 0
  .amdhsa_kernarg_size 72
  .amdhsa_user_sgpr_count 2
  .amdhsa_user_sgpr_kernarg_segment_ptr 1
  .amdhsa_system_sgpr_workgroup_id_x 1
.end_amdhsa_kernel
"""


def code_prefetch(a, tag, lgw, cpf, v, s, start=None, end="L_code_end", wave=16):
    a(f"s_getpc_b64 s[{s}:{s+1}]")
    a.label(f"L_{tag}_pc")
    a(f"""
    s_lshr_b32 s{s+2}, s2, 3
    s_lshl_b32 s{s+2}, s{s+2}, {lgw}
    s_add_u32 s{s+2}, s{s+2}, s{wave}
    s_lshl_b32 s{s+2}, s{s+2}, {cpf}
    v_add_u32 v{v}, s{s+2}, v0
    v_lshlrev_b32 v{v}, 7, v{v}
    """)
    if start:
        a(f"v_add_u32 v{v}, {start}-L_{tag}_pc, v{v}")
    a(f"""
    s_mov_b32 s{s+2}, {end}-L_{tag}_pc-4
    v_min_u32 v{v}, s{s+2}, v{v}
    s_mov_b64 exec, {(1 << (1 << cpf)) - 1}
    global_load_dword v{v}, v{v}, s[{s}:{s+1}]
    s_mov_b64 exec, -1
    """)
```

```python
from asmlib import *
from gemm2 import MB, WS_Q, WS_KV, WS_PQ, WS_OA, WS_OB, WS_KVP, WS_ZP, WS_SIZE, stamp, stamp_out

NSLOT = 4
SLOT = 32768
LDS_B = NSLOT * SLOT
LDS_F = LDS_B + 4096
LDS_TOTAL = LDS_F + 64

V_L16 = 2
V_A = 3
V_B = 4
V_T = 5
Q = 12
PQ = 20
SEL = 28
S = [32, 48]
P = 64
O = 72
L = 88
ZL = 92
KB = [96, 104]
VB = [112, 120]
BL = 128
BF = 160
NEGM = BL
V_FW = 184
V_FR = 185
V_FV = 186
V_FS = 187
NV = 188


def mf32(d, a_, b_, c):
    return f"v_mfma_f32_32x32x16_bf16 {vr(d,16)}, {vr(a_,4)}, {vr(b_,4)}, " + (c if isinstance(c, str) else vr(c, 16))


def mf16(d, a_, b_, c):
    return f"v_mfma_f32_16x16x32_bf16 {vr(d,4)}, {vr(a_,4)}, {vr(b_,4)}, " + (c if isinstance(c, str) else vr(c, 4))


def max16(a, dst, src, extra):
    a(f"v_max3_f32 v{dst}, v{src}, v{src+1}, v{src+2}")
    for k in range(6):
        a(f"v_max3_f32 v{dst}, v{dst}, v{src+3+2*k}, v{src+4+2*k}")
    a(f"v_max3_f32 v{dst}, v{dst}, v{src+15}, v{extra}")


DEF_ORDER = "p1 M1 e0 r0 e1 r1 e2 r2 e3 M5 e4 r3 e5 x e6 x e7 M6 c0 c1 c2 c3 M2 e8 x e9 x e10 x e11 M3 e12 x e13 x e14 e15 w p0 M4 c4 c5 c6 c7"


def attn_kernel(name, dbg="", order=DEF_ORDER, touch=True, IA0=4, IA=2, CPF=None, CPN=None, SLP=0, FSP=9, L1=0, HS=0, HB=2, TA=0, TD=0):
    a = Asm()
    a.raw(kernel_header(name))
    a(f"""
    s_cmp_ge_u32 s2, {8 if "few" in dbg else 64 if "some" in dbg else 256}
    s_cbranch_scc1 L_{name}_end
    """)
    if "stamp" in dbg:
        a("s_memrealtime s[40:41]\ns_memtime s[42:43]\ns_mov_b32 s60, 0\ns_mov_b32 s61, 0")
    T = V_T
    NX = order.split().count("x")
    a(f"""
    s_load_dwordx2 s[12:13], s[0:1], 64
    s_load_dwordx2 s[36:37], s[0:1], 16
    s_load_dwordx2 s[38:39], s[0:1], 40
    v_lshrrev_b32 v1, 6, v0
    v_and_b32 v0, 63, v0
    s_and_b32 s17, s2, 7
    v_readfirstlane_b32 s16, v1
    s_lshl_b32 s17, s17, 2
    s_lshr_b32 s28, s2, 6
    s_add_u32 s17, s17, s28
    s_bfe_u32 s18, s2, 0x30003
    v_lshlrev_b32 v{V_L16}, 4, v0
    s_mov_b32 s14, {WS_SIZE}
    s_mov_b32 s15, 0x20000
    s_lshl_b32 s19, s17, 18
    s_add_u32 s19, s19, {WS_KV}
    s_lshl_b32 s28, s16, 12
    s_add_u32 s20, s19, s28
    s_mov_b32 s21, s28
    s_lshl_b32 s29, s18, 3
    s_add_u32 s29, s29, s16
    s_lshl_b32 s22, s17, 17
    s_lshl_b32 s30, s29, 11
    s_add_u32 s22, s22, s30
    s_lshl_b32 s23, s29, 16
    s_lshl_b32 s30, s17, 11
    s_add_u32 s23, s23, s30
    s_mov_b32 m0, s21
    s_add_u32 s26, s22, {WS_PQ}
    s_add_u32 s22, s22, {WS_Q}
    s_mov_b32 s27, 0
    """)
    if CPF is not None:
        code_prefetch(a, name, 3, CPF, 11, 62, end=f"L_{name}_slow")
    if TD:
        a(f"""s_load_dwordx2 s[4:5], s[0:1], 48
        s_mov_b32 s6, {8*MB}
        s_mov_b32 s7, 0x20000
        s_and_b32 s58, s2, 3
        s_lshl_b32 s58, s58, 21
        s_lshr_b32 s59, s2, 3
        s_lshl_b32 s59, s59, 16
        s_add_u32 s58, s58, s59""")
    a("s_waitcnt lgkmcnt(0)")
    if "pst" in dbg:
        a("s_memtime s[52:53]")

    def dma():
        out = []
        for k in range(4):
            out.append(f"buffer_load_dwordx4 v{V_L16}, s[12:15], s20 offen offset:{k*1024} lds")
        out.append(f"""s_add_u32 s27, s27, 1
            s_add_u32 s20, s20, {SLOT}
            s_cmp_ge_u32 s27, 8
            s_cselect_b32 s20, 0x40000000, s20
            s_add_u32 s21, s21, {SLOT}
            s_and_b32 s21, s21, {NSLOT*SLOT-1}
            s_mov_b32 m0, s21""")
        return out

    d0 = dma()
    if HS:
        assert L1 == 1
        ld = lambda o: f"buffer_load_dwordx4 v{V_L16}, s[12:15], s28 offen offset:{o} lds"
        d0 = [f"s_lshl_b32 s29, s16, 11\ns_add_u32 s28, s19, s29\ns_mov_b32 m0, s29\ns_nop 0\n" + ld(0), ld(1024), "", "",
              f"s_add_u32 s28, s28, 16384\ns_add_u32 m0, s29, 16384\ns_nop 0\n" + ld(0) + "\n" + ld(1024) + "\n" + d0[4]]
    if L1 & 2:
        for c in range(2):
            a(f"buffer_load_dwordx4 {vr(Q+4*c,4)}, v{V_L16}, s[12:15], s22 offen offset:{c*1024}")
    for x in d0[:4]:
        a(x)
    if not L1 & 2:
        for c in range(2):
            a(f"buffer_load_dwordx4 {vr(Q+4*c,4)}, v{V_L16}, s[12:15], s22 offen offset:{c*1024}")
    a(d0[4])
    a("s_nop 0")
    if not L1 & 1:
        for x in dma():
            a(x)
    a(f"""
    v_bfe_u32 v1, v0, 4, 1
    v_lshlrev_b32 v{T}, 11, v1
    v_lshrrev_b32 v1, 5, v0
    v_lshl_add_u32 v{T}, v1, 15, v{T}
    v_and_b32 v1, 15, v0
    v_lshl_add_u32 v{T}, v1, 4, v{T}
    v_lshlrev_b32 v{T+1}, 7, v1
    s_bfe_u32 s28, s16, 0x10001
    s_and_b32 s29, s16, 1
    s_lshr_b32 s30, s16, 2
    s_lshl_b32 s24, s17, 16
    s_add_u32 s24, s24, {WS_KVP}
    s_lshl_b32 s31, s29, 10
    s_add_u32 s24, s24, s31
    s_lshl_b32 s31, s28, 9
    s_add_u32 s24, s24, s31
    s_lshl_b32 s31, s30, 8
    s_add_u32 s24, s24, s31
    s_lshl_b32 s25, s17, 11
    s_add_u32 s25, s25, {WS_ZP}
    s_lshl_b32 s31, s29, 6
    s_add_u32 s25, s25, s31
    s_lshl_b32 s31, s28, 5
    s_add_u32 s25, s25, s31
    s_lshl_b32 s31, s30, 4
    s_add_u32 s25, s25, s31
    v_mov_b32 v{V_A}, v{V_L16}
    v_add_u32 v{V_B}, {SLOT}, v{V_L16}
    s_mov_b32 s33, {SLOT}
    v_lshrrev_b32 v1, 4, v0
    v_lshrrev_b32 v{T+2}, 2, v0
    v_xor_b32 v1, v1, v{T+2}
    v_and_b32 v1, 1, v1
    v_cmp_eq_u32 vcc, 0, v1
    v_mov_b32 v1, 0x3f803f80
    v_cndmask_b32 v{SEL}, 0, v1, vcc
    v_cndmask_b32 v{SEL+1}, 0, v1, vcc
    v_cndmask_b32 v{SEL+2}, 0, v1, vcc
    v_cndmask_b32 v{SEL+3}, 0, v1, vcc
    s_and_b32 s28, s16, 3
    s_lshl_b32 s28, s28, 10
    s_lshl_b32 s31, s30, 9
    s_add_u32 s28, s28, s31
    s_add_u32 s28, s28, {LDS_B}
    v_and_b32 v1, 31, v0
    v_lshlrev_b32 v1, 4, v1
    v_add_u32 v{T+2}, s28, v1
    v_add_u32 v{T+3}, {LDS_B}, v{V_L16}
    v_lshlrev_b32 v{T+4}, 5, v0
    s_bitcmp1_b32 s2, 7
    s_cselect_b32 s8, s38, s36
    s_cselect_b32 s9, s39, s37
    s_mov_b32 s10, {2*MB}
    s_mov_b32 s11, 0x20000
    s_and_b32 s28, s2, 127
    s_lshl_b32 s28, s28, 3
    s_add_u32 s28, s28, s16
    s_lshl_b32 s32, s28, 11
    s_lshl_b32 s28, s16, 2
    s_add_u32 s28, s28, {LDS_F}
    v_mov_b32 v{V_FW}, s28
    v_and_b32 v1, 7, v0
    v_lshlrev_b32 v1, 2, v1
    v_add_u32 v{V_FR}, {LDS_F}, v1
    v_mov_b32 v{V_FS}, 0
    ds_write_b32 v{V_FW}, v{V_FS}
    """)
    for r in range(16):
        a(f"v_mov_b32 v{O+r}, 0")
    for r in range(4):
        a(f"v_mov_b32 v{L+r}, 0")
        a(f"v_mov_b32 v{P+4+r}, 0")
        a(f"v_mov_b32 v{VB[1]+4+r}, 0")
    if L1 & 8:
        a("s_waitcnt vmcnt(2) lgkmcnt(0)\ns_barrier")
    elif L1 & 1:
        if "pstA" in dbg:
            a("s_memtime s[54:55]")
        a(f"s_waitcnt vmcnt({2 if HS else 0}) lgkmcnt(0)")
        if "pstB" in dbg:
            a("s_memtime s[54:55]")
        if L1 & 4:
            a("s_barrier")
        for x in dma():
            a(x)
        if not L1 & 4:
            a("s_barrier")
    else:
        a("s_waitcnt vmcnt(4) lgkmcnt(0)\ns_barrier")
    if "peel" not in dbg:
        stamp(a, 1, dbg)

    late = dma()
    for i in range(8):
        late.append(f"buffer_load_dwordx4 {vr(BL+4*i,4)}, v{T}, s[12:15], s24 offen" + ("\ns_add_u32 s24, s24, 4096" if i < 7 else ""))
    late.append(f"buffer_load_dwordx4 {vr(ZL,4)}, v{T+1}, s[12:15], s25 offen")
    for c in range(2):
        late.append(f"buffer_load_dwordx4 {vr(PQ+4*c,4)}, v{V_L16}, s[12:15], s26 offen offset:{c*1024}")

    def rdK(t2, buf):
        base, off = (V_A, t2 * 4096) if t2 < 8 else (V_B, (t2 - 8) * 4096)
        return [(f"ds_read_b128 {vr(KB[buf]+4*c,4)}, v{base} offset:{off+c*1024}", KB[buf] + 4 * c, 4) for c in range(2)]

    def rdV(t1, buf):
        base, off = (V_A, t1 * 4096) if t1 < 8 else (V_B, (t1 - 8) * 4096)
        return [(f"ds_read_b128 {vr(VB[buf]+4*c,4)}, v{base} offset:{off+2048+c*1024}", VB[buf] + 4 * c, 4) for c in range(2)]

    for r in rdK(0, 0) + rdK(1, 1) + rdV(0, 0):
        a.ds(*r)
    if L1 & 8:
        a("s_waitcnt vmcnt(0)")
        if L1 & 16:
            for x in dma():
                a(x)
    a.need((KB[0], 8))
    a(mf32(S[0], KB[0], Q, "0"))
    a(mf32(S[0], KB[0] + 4, Q + 4, S[0]))
    if L1 & 8 and not L1 & 16:
        for x in dma():
            a(x)
        a("s_nop 0")
    for x in late[:5]:
        a(x)
    late = late[5:]
    a.lds_drain()

    def slot(i, extra):
        X, Y = S[i % 2], S[(i + 1) % 2]
        Kn, Vc, Vp = KB[(i + 1) % 2], VB[i % 2], VB[(i + 1) % 2]
        rd = rdK(i + 2, i % 2) + rdV(i + 1, (i + 1) % 2)
        for tok in order.split():
            if tok == "x":
                if extra:
                    it = extra.pop(0)
                    if isinstance(it, tuple):
                        a.ds(*it)
                    elif it is not None:
                        a(it)
                continue
            if tok == "w":
                a.lds_drain()
                continue
            k = int(tok[1:])
            if ("noL" in dbg and tok in ("M4", "M6")) or ("noS" in dbg and tok in ("M1", "M2")) or ("noO" in dbg and tok in ("M3", "M5")) or ("noE" in dbg and tok[0] == "e") or ("noP" in dbg and tok[0] == "p"):
                continue
            if tok[0] == "e":
                a(f"v_exp_f32 v{X+k}, v{X+k}")
            elif tok[0] == "c":
                a(f"v_cvt_pk_bf16_f32 v{P+k}, v{X+2*k}, v{X+2*k+1}")
            elif tok[0] == "r":
                if "nord" not in dbg:
                    a.ds(*rd[k])
            elif tok[0] == "n":
                a(f"s_nop {k}")
            elif tok[0] == "p":
                a(f"s_setprio {k}")
            elif tok[0] == "A":
                a.need((Kn + 4 * (k & 1), 4))
                a(mf16(Y + 4 * k, Kn + 4 * (k & 1), Q + 4 * (k >> 1), "0"))
            elif tok[0] == "B":
                vv = (Vc if k < 2 else Vp) + 4 * (k & 1)
                a.need((vv, 4))
                a(mf16(O + 4 * k, vv, P + 4 * (k >> 1), O + 4 * k))
            elif tok == "M1":
                a.need((Kn, 4))
                a(mf32(Y, Kn, Q, "0"))
            elif tok == "M2":
                a.need((Kn + 4, 4))
                a(mf32(Y, Kn + 4, Q + 4, Y))
            elif tok == "M3":
                a.need((Vc, 4))
                a(mf32(O, Vc, P, O))
            elif tok == "M4":
                a(mf16(L, SEL, P, L))
            elif tok == "M5":
                a.need((Vp + 4, 4))
                a(mf32(O, Vp + 4, P + 4, O))
            elif tok == "M6":
                a(mf16(L, SEL, P + 4, L))
            else:
                raise ValueError(tok)

    def bpart1():
        for st in (4, 8, 16):
            for i in range(0, 32, 2 * st):
                for r in range(4):
                    a(f"v_add_f32 v{BL+i+r}, v{BL+i+r}, v{BL+i+st+r}")
        for r in range(4):
            a(f"v_mov_b32 v{BL+4+r}, v{BL+r}")
        for sh in (1, 2, 4, 8):
            for r in range(4):
                a(f"v_add_f32_dpp v{ZL+r}, v{ZL+r}, v{ZL+r} row_ror:{sh} row_mask:0xf bank_mask:0xf")
            if sh == 1:
                for r in range(4):
                    a(f"v_permlane32_swap_b32 v{BL+r}, v{BL+4+r}")
            elif sh == 2:
                for r in range(4):
                    a(f"v_add_f32 v{BL+r}, v{BL+r}, v{BL+4+r}")
            elif sh == 4:
                a(f"v_cvt_pk_bf16_f32 v{BL+8}, v{BL}, v{BL+1}")
                a(f"v_cvt_pk_bf16_f32 v{BL+9}, v{BL+2}, v{BL+3}")
        a(f"v_cvt_pk_bf16_f32 v{BL+10}, v{ZL}, v{ZL+1}")
        a(f"v_cvt_pk_bf16_f32 v{BL+11}, v{ZL+2}, v{ZL+3}")
        a.ds(f"ds_write_b128 v{T+2}, {vr(BL+8,4)}")

    def bpart2():
        for c in range(2):
            for dd in range(2):
                w = 2 * c + dd
                a.ds(f"ds_read_b64 {vr(BF+4*c+2*dd,2)}, v{T+3} offset:{w*1024}", BF + 4 * c + 2 * dd, 2)
                a.ds(f"ds_read_b64 {vr(BF+8+4*c+2*dd,2)}, v{T+3} offset:{w*1024+8}", BF + 8 + 4 * c + 2 * dd, 2)

    NUM, DEN = BL, BL + 16

    def bpart3():
        a.need((BF, 16))
        a(mf32(NUM, BF, PQ, "0"))
        a(mf32(DEN, BF + 8, PQ, "0"))
        a(mf32(NUM, BF + 4, PQ + 4, NUM))
        a(mf32(DEN, BF + 12, PQ + 4, DEN))

    def bpart4():
        a(f"v_add_f32 v{DEN}, {hex(f32bits(1e-6))}, v{DEN}")
        a(f"v_rcp_f32 v{DEN}, v{DEN}")
        a(f"s_add_u32 s28, s23, {WS_OB}")
        for r in range(16):
            a(f"v_mul_f32 v{NUM+r}, v{NUM+r}, v{DEN}")
        for k in range(8):
            a(f"v_cvt_pk_bf16_f32 v{BF+16+k}, v{NUM+2*k}, v{NUM+2*k+1}")
        a(f"buffer_store_dwordx4 {vr(BF+16,4)}, v{V_L16}, s[12:15], s28 offen")
        a(f"buffer_store_dwordx4 {vr(BF+20,4)}, v{V_L16}, s[12:15], s28 offen offset:1024")

    spins = []

    def stage(peel):
        nonlocal late
        ia = IA0 if peel == 0 else IA
        tag = f"{name}_{peel}"
        for i in range(8):
            pre = []
            if HS and peel == 0 and i == HB:
                nl = sum(x.count("buffer_load") for x in late)
                a(f"s_waitcnt vmcnt({19 - nl})\ns_barrier")
            if i == ia and not (peel is None and "noflag" in dbg):
                assert not late
                a(f"s_waitcnt vmcnt({ {0: 15, 1: (5 if touch else 4) + TA + TD, None: 4}[peel] })")
                if peel == 1:
                    bpart1()
                a(f"v_add_u32 v{V_FS}, 1, v{V_FS}")
                a.ds(f"ds_write_b32 v{V_FW}, v{V_FS}")
            if i == 5 and not (peel is None and "noflag" in dbg):
                pre = [(f"ds_read_b32 v{V_FV}, v{V_FR}", V_FV, 1)]
            if i == 6:
                assert not late
                if not (peel is None and "noflag" in dbg):
                    a.need((V_FV, 1))
                    a(f"""
                    v_cmp_ge_u32 vcc, v{V_FV}, v{V_FS}
                    s_cmp_eq_u64 vcc, -1
                    s_cbranch_scc0 L_{tag}_spin
                    """)
                    a.label(f"L_{tag}_go")
                    spins.append(tag)
                if peel == 1:
                    bpart2()
                late = dma() if not (peel is None and "nodma" in dbg) else []
                if peel == 0 and touch:
                    late.append(f"buffer_load_dword v{T+5}, v{T+4}, s[8:11], s32 offen")
                if peel == 0 and TD:
                    late.append(f"buffer_load_dword v{T+5}, off, s[4:7], s58")
                if peel == 0 and TA:
                    late.append(f"s_add_u32 s35, s23, {WS_OA}\nbuffer_load_dword v{T+5}, off, s[12:15], s35")
            if i == 7 and peel == 1:
                bpart3()
            extra = late[:NX]
            late = late[NX:]
            while pre and len(extra) < NX - 1:
                extra.append(None)
            extra += pre
            slot(i, extra)
            assert not extra
        assert not late
        if peel == 1:
            bpart4()
        a(f"""
        s_add_u32 s33, s33, {SLOT}
        s_and_b32 s33, s33, {NSLOT*SLOT-1}
        v_mov_b32 v{V_A}, v{V_B}
        v_add_u32 v{V_B}, s33, v{V_L16}
        """)

    stage(0)
    stage(1)
    q0 = list(a.ldsq)
    a("s_mov_b32 s34, 6")
    if "peel" in dbg:
        stamp(a, 1, dbg)
    a.label(f"L_{name}_loop")
    stage(None)
    assert a.ldsq == q0, (a.ldsq, q0)
    a(f"""
    s_sub_u32 s34, s34, 1
    s_cmp_lg_u32 s34, 0
    s_cbranch_scc1 L_{name}_loop
    """)
    a(mf32(O, VB[1] + 4, P + 4, O))
    a(mf16(L, SEL, P + 4, L))
    a.ldsq = []
    a("s_waitcnt vmcnt(0) lgkmcnt(0)")
    stamp(a, 2, dbg)
    if CPN is not None:
        code_prefetch(a, name + "n", 3, CPN, 11, 62, start="oproj_kernel")
    a(f"""
    v_mov_b32 v{T}, {hex(f32bits(2.0**60))}
    v_mov_b32 v{T+1}, {hex(f32bits(2.0**126))}
    v_mov_b32 v{T+2}, {hex(f32bits(2.0**-60))}
    s_add_u32 s30, s23, {WS_OA}
    s_nop 6
    """)
    a(f"v_add_f32 v1, |v{O}|, |v{O+1}|")
    for r in range(2, 16):
        a(f"v_add_f32 v1, v1, |v{O+r}|")
    a(f"""
    v_cmp_lt_f32 vcc, v{L}, v{T}
    v_cmp_lt_f32 s[28:29], v1, v{T+1}
    s_and_b64 vcc, vcc, s[28:29]
    v_cmp_gt_f32 s[28:29], v{L}, v{T+2}
    s_and_b64 vcc, vcc, s[28:29]
    s_cmp_eq_u64 vcc, -1
    """)
    if "no" not in dbg:
        a(f"s_cbranch_scc0 L_{name}_slow")
    a.label(f"L_{name}_fin")
    a(f"v_rcp_f32 v1, v{L}\ns_nop 0")
    for r in range(16):
        a(f"v_mul_f32 v{O+r}, v{O+r}, v1")
    for k in range(8):
        a(f"v_cvt_pk_bf16_f32 v{P+k}, v{O+2*k}, v{O+2*k+1}")
    a(f"buffer_store_dwordx4 {vr(P,4)}, v{V_L16}, s[12:15], s30 offen")
    a(f"buffer_store_dwordx4 {vr(P+4,4)}, v{V_L16}, s[12:15], s30 offen offset:1024")
    if "sync" in dbg:
        sl = int(dbg.split("stamp")[1][0])
        FL = 27 * MB + sl * 131072
        a(f"""
        s_lshl_b32 s28, s18, 1
        s_lshr_b32 s29, s16, 2
        s_add_u32 s28, s28, s29
        s_lshl_b32 s28, s28, {FSP}
        s_lshl_b32 s29, s17, 4
        s_add_u32 s28, s28, s29
        s_and_b32 s29, s16, 3
        s_lshl_b32 s29, s29, 2
        s_add_u32 s28, s28, s29
        s_add_u32 s28, s28, {FL}
        v_mov_b32 v1, 1
        v_mov_b32 v{T}, 0
        s_and_b32 s29, s2, 3
        s_lshl_b32 s29, s29, 2
        s_bfe_u32 s30, s2, 0x20003
        s_add_u32 s29, s29, s30
        s_lshl_b32 s29, s29, {FSP}
        s_add_u32 s29, s29, {FL}
        v_lshlrev_b32 v{T+1}, 3, v0
        s_mov_b32 s31, 4000
        s_waitcnt vmcnt(0)
        s_mov_b64 exec, 1
        buffer_store_dword v1, v{T}, s[12:15], s28 offen
        s_mov_b64 exec, -1
        s_memtime s[46:47]
        s_cmp_lg_u32 s16, 0
        s_cbranch_scc1 L_{name}_w
        L_{name}_poll:
        s_sleep {SLP}
        buffer_load_dwordx2 v[{T+3}:{T+4}], v{T+1}, s[12:15], s29 offen sc0 sc1
        s_add_u32 s61, s61, 1
        s_sub_u32 s31, s31, 1
        s_cmp_eq_u32 s31, 0
        s_cbranch_scc1 L_{name}_w
        s_waitcnt vmcnt(0)
        v_and_b32 v{T+2}, v{T+4}, v{T+3}
        v_cmp_eq_u32 vcc, 1, v{T+2}
        s_cmp_eq_u64 vcc, -1
        s_cbranch_scc0 L_{name}_poll
        L_{name}_w:
        s_barrier
        """)
        if "syncl" in dbg:
            a(f"""
            s_lshr_b32 s29, s29, {FSP}
            s_and_b32 s29, s29, 15
            s_lshl_b32 s29, s29, 18
            s_lshl_b32 s30, s16, 15
            s_add_u32 s29, s29, s30
            s_add_u32 s29, s29, {WS_OA}
            buffer_load_dwordx4 {vr(P,4)}, v{V_L16}, s[12:15], s29 offen
            buffer_load_dwordx4 {vr(P+4,4)}, v{V_L16}, s[12:15], s29 offen offset:2048
            """)
    if "stamp" in dbg:
        if "pst" in dbg:
            a("s_sub_u32 s60, s52, s42\ns_sub_u32 s61, s54, s42")
        stamp_out(a, int(dbg.split("stamp")[1][0]), nw_shift=3)
    a.label(f"L_{name}_end")
    a("s_endpgm")

    for tag in spins:
        a.label(f"L_{tag}_spin")
        if "stamp" in dbg:
            a(f"s_add_u32 s{61 if 'None' in tag else 60}, s{61 if 'None' in tag else 60}, 1")
        a(f"""
        s_sleep 1
        ds_read_b32 v{V_FV}, v{V_FR}
        s_waitcnt lgkmcnt(0)
        v_cmp_ge_u32 vcc, v{V_FV}, v{V_FS}
        s_cmp_eq_u64 vcc, -1
        s_cbranch_scc0 L_{tag}_spin
        s_branch L_{tag}_go
        """)
    SS = S[0]
    a.label(f"L_{name}_slow")
    a(f"""
    s_mov_b32 s28, s19
    s_mov_b32 s29, 64
    v_mov_b32 v{T+3}, 0xff800000
    """)
    a.label(f"L_{name}_slowa")
    a(f"""
    buffer_load_dwordx4 {vr(KB[0],4)}, v{V_L16}, s[12:15], s28 offen
    buffer_load_dwordx4 {vr(KB[0]+4,4)}, v{V_L16}, s[12:15], s28 offen offset:1024
    s_waitcnt vmcnt(0)
    """)
    a(mf32(SS, KB[0], Q, "0"))
    a(mf32(SS, KB[0] + 4, Q + 4, SS))
    a("s_nop 7\ns_nop 3")
    max16(a, 1, SS, T + 3)
    a(f"""
    v_mov_b32 v{T+3}, v1
    s_add_u32 s28, s28, 4096
    s_sub_u32 s29, s29, 1
    s_cmp_lg_u32 s29, 0
    s_cbranch_scc1 L_{name}_slowa
    s_nop 1
    v_permlane32_swap_b32 v1, v{T+3}
    s_nop 1
    v_max_f32 v1, v1, v{T+3}
    """)
    for r in range(16):
        a(f"v_mul_f32 v{NEGM+r}, -1.0, v1")
    for r in range(16):
        a(f"v_mov_b32 v{O+r}, 0")
    for r in range(4):
        a(f"v_mov_b32 v{L+r}, 0")
    a("s_mov_b32 s28, s19\ns_mov_b32 s29, 64")
    a.label(f"L_{name}_slowb")
    a(f"""
    buffer_load_dwordx4 {vr(KB[0],4)}, v{V_L16}, s[12:15], s28 offen
    buffer_load_dwordx4 {vr(KB[0]+4,4)}, v{V_L16}, s[12:15], s28 offen offset:1024
    buffer_load_dwordx4 {vr(VB[0],4)}, v{V_L16}, s[12:15], s28 offen offset:2048
    buffer_load_dwordx4 {vr(VB[0]+4,4)}, v{V_L16}, s[12:15], s28 offen offset:3072
    s_waitcnt vmcnt(0)
    """)
    a(mf32(SS, KB[0], Q, NEGM))
    a(mf32(SS, KB[0] + 4, Q + 4, SS))
    a("s_nop 7\ns_nop 3")
    for k in range(16):
        a(f"v_exp_f32 v{SS+k}, v{SS+k}")
    a("s_nop 0")
    for k in range(8):
        a(f"v_cvt_pk_bf16_f32 v{P+k}, v{SS+2*k}, v{SS+2*k+1}")
    a("s_nop 1")
    a(mf32(O, VB[0], P, O))
    a(mf16(L, SEL, P, L))
    a(mf32(O, VB[0] + 4, P + 4, O))
    a(mf16(L, SEL, P + 4, L))
    a(f"""
    s_add_u32 s28, s28, 4096
    s_sub_u32 s29, s29, 1
    s_cmp_lg_u32 s29, 0
    s_cbranch_scc1 L_{name}_slowb
    s_nop 7
    s_nop 3
    s_branch L_{name}_fin
    """)
    return a.text(), kernel_desc(name, NV, NV), LDS_TOTAL
```

```python
import math
from asmlib import *

MB = 1 << 20
WS_Q = 0
WS_KV = 4 * MB
WS_PQ = 12 * MB
WS_OA = 16 * MB
WS_OB = 20 * MB
WS_KVP = 24 * MB
WS_ZP = 26 * MB
WS_SIZE = 28 * MB

LOG2E = math.log2(math.e)
QSCALE = 32 ** -0.5 * LOG2E

V_OFFX = 2
V_OFFW = 6
V_XB = 10
V_XC = 12
V_WB = 14
V_WC = 16
V_T = 18
ACC = 32
NACC_OFF = 224
NV = 224 + 112
NX, NW = 3, 5
XSZ, WSZ = 32768, 12288
LDS_W = 0
LDS_X = NW * WSZ
LDS_TOTAL = LDS_X + NX * XSZ


def acc(rt, ct):
    return ACC + (rt * 6 + ct) * 4


def ar(b, n):
    return f"a[{b}:{b+n-1}]"


def xf(b, rt):
    return b * 56 + rt * 4


def wf(b, ct):
    return b * 56 + 32 + ct * 4


from gemm2 import stamp, stamp_out


def qkv_kernel(name, dbg="", rotmask=15, BODY=4, PEEL=4, xrot=0, NFIRST=3, L0=4, LS=6, R0=3, RS=2, BAR=2, CAP=2, LSB=2, PH=0, PFD=2, PAT=None, CPF=0, SF=""):
    a = Asm()
    a.raw(kernel_header(name))
    a(f"""
    s_cmp_ge_u32 s2, 256
    s_cbranch_scc1 L_{name}_end
    """)
    if "stamp" in dbg:
        a("s_memrealtime s[40:41]\ns_memtime s[42:43]")
    a(f"""
    s_load_dwordx4 s[20:23], s[0:1], 0
    s_load_dwordx4 s[24:27], s[0:1], 24
    s_load_dwordx2 s[12:13], s[0:1], 64
    v_lshrrev_b32 v1, 6, v0
    v_and_b32 v0, 63, v0
    s_and_b32 s28, s2, 7
    s_lshr_b32 s29, s2, 3
    v_readfirstlane_b32 s16, v1
    s_lshr_b32 s19, s28, 2
    s_bfe_u32 s17, s28, 0x10001
    s_lshl_b32 s17, s17, 2
    s_and_b32 s30, s29, 3
    s_add_u32 s17, s17, s30
    s_and_b32 s18, s28, 1
    s_lshl_b32 s18, s18, 3
    s_lshr_b32 s30, s29, 2
    s_add_u32 s18, s18, s30
    """)
    if CPF:
        a(f"""
        s_getpc_b64 s[62:63]
        s_lshr_b32 s29, s2, 3
        s_lshl_b32 s29, s29, 2
        s_add_u32 s29, s29, s16
        s_lshl_b32 s29, s29, {CPF}
        v_add_u32 v31, s29, v0
        v_lshlrev_b32 v31, 7, v31
        v_mov_b32 v30, L_code_end-L_{name}_pc-4
        v_min_u32 v31, v31, v30
        s_mov_b64 exec, {(1 << (1 << CPF)) - 1}
        global_load_dword v31, v31, s[62:63]
        s_mov_b64 exec, -1
        """.replace("s_getpc_b64 s[62:63]", f"s_getpc_b64 s[62:63]\nL_{name}_pc:"))
    T = V_T
    a(f"""
    v_lshrrev_b32 v1, 3, v0
    s_lshl_b32 s28, s17, 8
    s_lshl_b32 s29, s16, 6
    s_add_u32 s28, s28, s29
    v_add_u32 v1, s28, v1
    v_lshlrev_b32 v1, 11, v1
    v_lshrrev_b32 v{T}, 4, v0
    v_and_b32 v{T+1}, 7, v0
    v_xor_b32 v{T+2}, v{T}, v{T+1}
    v_xor_b32 v{T+3}, 4, v{T+2}
    v_lshl_add_u32 v{V_OFFX}, v{T+2}, 4, v1
    v_lshl_add_u32 v{V_OFFX+1}, v{T+3}, 4, v1
    v_add_u32 v{V_OFFX+2}, {2*(16384-1024)}, v{V_OFFX}
    v_add_u32 v{V_OFFX+3}, {3*(16384-1024)}, v{V_OFFX+1}
    v_add_u32 v{V_OFFX+1}, {16384-1024}, v{V_OFFX+1}
    """)
    a(f"""
    v_lshrrev_b32 v1, 5, v0
    v_lshlrev_b32 v1, 2, v1
    v_bfe_u32 v{T}, v0, 2, 2
    v_add_u32 v1, v1, v{T}
    v_mul_u32_u24 v1, 6144, v1
    v_bfe_u32 v{T}, v0, 4, 1
    v_lshl_add_u32 v1, v{T}, 6, v1
    v_and_b32 v{T}, 3, v0
    v_lshlrev_b32 v{T}, 4, v{T}
    s_lshl_b32 s28, s18, 7
    s_mul_i32 s29, s16, 3
    """)
    for jj in range(3):
        a(f"""
        s_add_u32 s30, s29, {jj}
        s_lshr_b32 s31, s30, 2
        s_and_b32 s30, s30, 3
        s_and_b32 s32, s30, 1
        s_lshl_b32 s32, s32, 5
        s_mul_i32 s30, s30, {8*6144}
        s_lshl_b32 s31, s31, 11
        s_add_u32 s30, s30, s31
        s_add_u32 s30, s30, s28
        s_sub_u32 s30, s30, {jj*1024}
        v_xor_b32 v{T+1}, s32, v{T}
        v_add3_u32 v{V_OFFW+jj}, s30, v1, v{T+1}
        """)
    a(f"""
    v_and_b32 v1, 15, v0
    s_lshr_b32 s28, s16, 1
    s_lshl_b32 s28, s28, 14
    s_add_u32 s28, s28, {LDS_X}
    v_lshlrev_b32 v{T}, 7, v1
    v_add_u32 v{T}, s28, v{T}
    v_bfe_u32 v1, v0, 1, 3
    v_lshrrev_b32 v{T+1}, 4, v0
    v_xor_b32 v1, v1, v{T+1}
    v_lshl_add_u32 v{V_XB}, v1, 4, v{T}
    v_xor_b32 v1, 4, v1
    v_lshl_add_u32 v{V_XB+1}, v1, 4, v{T}
    s_and_b32 s28, s16, 1
    s_lshl_b32 s28, s28, 8
    s_add_u32 s28, s28, {LDS_W}
    v_lshlrev_b32 v{T}, 10, v{T+1}
    v_add_u32 v{T}, s28, v{T}
    v_bfe_u32 v1, v0, 2, 2
    v_lshl_add_u32 v{T}, v1, 6, v{T}
    v_and_b32 v1, 3, v0
    v_lshl_add_u32 v{T}, v1, 3, v{T}
    v_bfe_u32 v1, v0, 4, 1
    v_lshl_add_u32 v{V_WB}, v1, 5, v{T}
    v_xor_b32 v{V_WB+1}, 32, v{V_WB}
    s_lshl_b32 s30, s16, 13
    s_add_u32 s30, s30, {LDS_X}
    s_mul_i32 s31, s16, 3072
    s_add_u32 s31, s31, {LDS_W}
    s_waitcnt lgkmcnt(0)
    {"s_memtime s[52:53]" if "stamp" in dbg else ""}
    s_cmp_eq_u32 s19, 0
    s_cselect_b32 s4, s20, s24
    s_cselect_b32 s5, s21, s25
    s_cselect_b32 s8, s22, s26
    s_cselect_b32 s9, s23, s27
    s_mov_b32 s6, {4*MB}
    s_mov_b32 s7, 0x20000
    s_mov_b32 s10, {6*MB}
    s_mov_b32 s11, 0x20000
    s_mov_b32 s14, {WS_SIZE}
    s_mov_b32 s15, 0x20000
    s_mov_b32 s22, s30
    s_mov_b32 s23, s31
    s_add_u32 s33, s17, s18
    s_and_b32 s33, s33, {rotmask}
    s_and_b32 s28, s2, 7
    s_mul_i32 s28, s28, {xrot}
    s_add_u32 s33, s33, s28
    s_and_b32 s33, s33, 15
    s_lshl_b32 s20, s33, 7
    s_mul_i32 s21, s33, {64*6144}
    s_mov_b32 s34, s20
    s_add_u32 s38, s20, 65536
    s_mov_b32 s35, s21
    s_mov_b32 s36, 16
    s_mov_b32 s37, 32
    s_mov_b32 s24, 0
    s_mov_b32 s25, 0
    s_mov_b32 s26, 0
    s_mov_b32 s27, 0
    """)
    a("s_add_u32 s57, s22, 4096")
    if PH:
        LX = {1: 0, 2: 1, 4: 2}[PH]
        a(f"""
        s_lshr_b32 s28, s2, 3
        s_lshl_b32 s28, s28, 2
        s_add_u32 s28, s28, s16
        s_lshl_b32 s29, s28, 3
        s_bfe_u32 s30, s2, 0x10001
        s_lshl_b32 s30, s30, 10
        s_add_u32 s29, s29, s30
        v_lshrrev_b32 v1, {LX}, v0
        v_add_u32 v1, s29, v1
        v_lshlrev_b32 v1, 11, v1
        v_and_b32 v{T}, {PH-1}, v0
        v_lshl_add_u32 v20, v{T}, 7, v1
        v_mov_b32 v1, 0x40000000
        v_cmp_gt_u32 vcc, {8*PH}, v0
        v_cndmask_b32 v20, v1, v20, vcc
        s_mul_i32 s29, s28, {PH//2}
        v_lshrrev_b32 v{T}, 3, v0
        v_mul_u32_u24 v{T+1}, 43, v{T}
        v_lshrrev_b32 v{T+1}, 7, v{T+1}
        v_mul_u32_u24 v22, 3, v{T+1}
        v_sub_u32 v{T}, v{T}, v22
        v_add_u32 v{T+1}, s29, v{T+1}
        v_mul_u32_u24 v21, 6144, v{T+1}
        v_lshl_add_u32 v21, v{T}, 11, v21
        v_and_b32 v{T}, 7, v0
        v_lshl_add_u32 v21, v{T}, 7, v21
        s_and_b32 s30, s2, 1
        s_lshl_b32 s30, s30, 10
        v_add_u32 v21, s30, v21
        v_cmp_gt_u32 vcc, {12*PH}, v0
        v_cndmask_b32 v21, v1, v21, vcc
        s_add_u32 s62, s20, {PH*128}
        s_and_b32 s62, s62, 2047
        s_add_u32 s63, s21, {PH*64*6144}
        s_cmp_ge_u32 s63, {6*MB}
        s_cselect_b32 s63, 0, s63
        s_mov_b32 s64, {16//PH - 1}
        s_mov_b32 s65, s62
        s_mov_b32 s66, s63
        """)


    def sal(text):
        return [("s", l.strip()) for l in text.strip().split("\n")]

    def dmaXA():
        out = [("m0", "s_add_u32 m0, s22, s24")]
        for jj in range(4):
            out.append(("ld", f"buffer_load_dwordx4 v{V_OFFX+jj}, s[4:7], s34 offen offset:{jj*1024} lds"))
        return out

    def dmaXB():
        ld = [("ld", f"buffer_load_dwordx4 v{V_OFFX+jj}, s[4:7], s38 offen offset:{jj*1024} lds") for jj in range(4)]
        return ([("m0", "s_add_u32 m0, s57, s24"), ld[0]]
                + sal(f"""s_add_u32 s24, s24, {XSZ}
                s_cmp_ge_u32 s24, {NX*XSZ};s_cselect_b32 s24, 0, s24""") + [ld[1]]
                + sal(f"""s_add_u32 s20, s20, 128
                s_and_b32 s20, s20, 2047
                s_sub_u32 s36, s36, 1""") + [ld[2]]
                + sal("s_cmp_gt_i32 s36, 0;s_cselect_b32 s34, s20, 0x40000000") + [ld[3]]
                + sal("s_add_u32 s38, s34, 65536"))

    def dmaW():
        ld = [("ld", f"buffer_load_dwordx4 v{V_OFFW+jj}, s[8:11], s35 offen offset:{jj*1024} lds") for jj in range(3)]
        return ([("m0", "s_add_u32 m0, s23, s25"), ld[0]]
                + sal(f"""s_add_u32 s25, s25, {WSZ}
                s_cmp_ge_u32 s25, {NW*WSZ};s_cselect_b32 s25, 0, s25""") + [ld[1]]
                + sal(f"""s_add_u32 s21, s21, {32*6144}
                s_cmp_ge_u32 s21, {6*MB};s_cselect_b32 s21, 0, s21
                s_sub_u32 s37, s37, 1""") + [ld[2]]
                + sal("s_cmp_gt_i32 s37, 0;s_cselect_b32 s35, s21, 0x40000000"))

    def pref():
        return ([("ld", "buffer_load_dword v31, v20, s[4:7], s65 offen"),
                 ("ld", "buffer_load_dword v31, v21, s[8:11], s66 offen")]
                + sal(f"""s_add_u32 s62, s62, {PH*128}
                s_and_b32 s62, s62, 2047
                s_add_u32 s63, s63, {PH*64*6144}
                s_cmp_ge_u32 s63, {6*MB};s_cselect_b32 s63, 0, s63
                s_sub_u32 s64, s64, 1
                s_cmp_gt_i32 s64, 0;s_cselect_b32 s65, s62, 0x40000000;s_cselect_b32 s66, s63, 0x40000000"""))

    abl = {"on": False}
    seq = []

    def emit_atom(at, record=True):
        k, x, tag = at
        if k == "ld":
            if a.lines[-1].strip().startswith("s_add_u32 m0"):
                a("s_nop 0")
            if record:
                seq.append(tag)
            if abl["on"] and ("nodma" in dbg or "nold" in dbg):
                return
        elif abl["on"] and "nodma" in dbg:
            return
        a(x.replace(";", "\n"))

    def group(kind, idx):
        g = {"XA": dmaXA, "XB": dmaXB, "W": dmaW, "P": pref}[kind]()
        return [(k, x, (kind[0], idx)) for k, x in g]

    def vm_for(needed):
        last = max(i for i, s in enumerate(seq) if s in needed)
        return len(seq) - 1 - last

    pro = [("X", i, 2 * i - 1) for i in range(NX)] + [("W", t, t - 1) for t in range(NW)]
    pro.sort(key=lambda z: (z[2], z[0] != "X"))
    pro = [(k, i) for k, i, _ in pro]

    def pgroup(kind, idx):
        return group("XA", idx) + group("XB", idx) if kind == "X" else group("W", idx)
    for kind, idx in pro[:NFIRST]:
        for at in pgroup(kind, idx):
            emit_atom(at)
    items = []
    if PH:
        for k in range(PFD):
            for at in group("P", k):
                emit_atom(at)
    for kind, idx in pro[NFIRST:]:
        items += pgroup(kind, idx)

    a(f"""
    v_mov_b32 v{V_XC}, v{V_XB}
    v_mov_b32 v{V_XC+1}, v{V_XB+1}
    v_mov_b32 v{V_WC}, v{V_WB}
    v_mov_b32 v{V_WC+1}, v{V_WB+1}
    """)
    if "stamp" in dbg:
        a("s_memtime s[54:55]")
    a(f"s_waitcnt vmcnt({vm_for({('X',0),('W',0)})})\ns_barrier")
    stamp(a, 1, dbg)
    if "stamp" in dbg:
        a("s_waitcnt lgkmcnt(0)\ns_sub_u32 s60, s52, s42\ns_sub_u32 s61, s54, s42")

    AOFF = 1000

    def reads(t):
        b = t % 2
        u = t % 2
        X = [(f"ds_read_b128 {ar(xf(b,rt),4)}, v{V_XC+u} offset:{rt*2048}", AOFF + xf(b, rt), 4) for rt in range(8)]
        W = []
        for ct in range(6):
            seg, nh = ct // 2, ct % 2
            for tt in range(2):
                W.append((f"ds_read_b64_tr_b16 {ar(wf(b,ct)+2*tt,2)}, v{V_WC+nh} offset:{seg*4096+tt*512}", AOFF + wf(b, ct) + 2 * tt, 2))
        return [X[0]] + W + X[1:]

    def advance_read(t):
        out = [f"s_add_u32 s27, s27, {WSZ}",
               f"s_cmp_ge_u32 s27, {NW*WSZ};s_cselect_b32 s27, 0, s27",
               f"v_add_u32 v{V_WC}, s27, v{V_WB};v_add_u32 v{V_WC+1}, s27, v{V_WB+1}"]
        if t % 2 == 0:
            out += [f"s_add_u32 s26, s26, {XSZ}",
                    f"s_cmp_ge_u32 s26, {NX*XSZ};s_cselect_b32 s26, 0, s26",
                    f"v_add_u32 v{V_XC}, s26, v{V_XB};v_add_u32 v{V_XC+1}, s26, v{V_XB+1}"]
        return out

    for r in reads(0):
        a.ds(*r)
    for x in advance_read(1):
        a(x.replace(";", "\n"))

    def step(t, prob, vmtag, record, last=None):
        nonlocal items
        b = t % 2
        rd = reads(t + 1)
        adv = advance_read(t + 2)
        advs = [x for x in adv if x.startswith("s_")]
        adv = [x for x in adv if x.startswith("v_")]
        m = 0
        nextld = L0
        for rt in range(8):
            for ct in range(6):
                a.need((AOFF + xf(b, rt), 4), (AOFF + wf(b, ct), 4))
                seg = ct // 2
                wfirst = (seg == 0) or (seg == 1 and prob == "A")
                A_, B_ = (wf(b, ct), xf(b, rt)) if wfirst else (xf(b, rt), wf(b, ct))
                c = vr(acc(rt, ct), 4)
                if t == 0:
                    c = "1.0" if (prob == "B" and ct < 4) else "0"
                if "nomfma" not in dbg:
                    a(f"v_mfma_f32_16x16x32_bf16 {vr(acc(rt,ct),4)}, {ar(A_,4)}, {ar(B_,4)}, {c}")
                n = 0
                if m < BAR:
                    for x in advs[2 * m:2 * m + 2]:
                        a(x.replace(";", "\n"))
                if m == BAR:
                    a.lds_drain()
                    a(f"s_waitcnt vmcnt({vmtag})")
                    if not (abl["on"] and "nobar" in dbg):
                        a("s_barrier")
                    items += group("W", t + NW)
                    if t % 2 == 1:
                        items += group("XA", (t - 1) // 2 + NX)
                    elif t >= 2:
                        items += group("XB", (t - 2) // 2 + NX)
                    if PH and t % (2 * PH) == 0:
                        items = group("P", 100 + t) + items if PAT == "first" else items + group("P", 100 + t)
                    nld = sum(1 for z in items if z[0] == "ld")
                    stride = LS if nld <= 7 else 4 if nld <= 9 else LSB
                elif m > BAR:
                    if m >= R0 and (m - R0) % RS == 0 and rd:
                        r = rd.pop(0)
                        if not (abl["on"] and "nord" in dbg):
                            a.ds(*r)
                        n += 1
                    elif not rd and adv:
                        x = adv.pop(0)
                        a(x.replace(";", "\n"))
                        n += x.count(";") + 1
                    while items and n < CAP:
                        k, x, tag = items[0]
                        if k == "ld":
                            if m < nextld:
                                break
                            nextld = m + stride
                            n += 1
                        elif n + x.count(";") + 1 > CAP and n > 0:
                            break
                        n += x.count(";") + 1
                        emit_atom(items.pop(0), record)
                if m == 47 and last:
                    a(last)
                m += 1
        assert not rd and not adv, (len(rd), len(adv))

    def needed(t):
        nd = {("W", t + 1)}
        if t % 2 == 1:
            nd.add(("X", (t + 1) // 2))
        return nd

    save = (list(a.lines), list(a.ldsq), list(items), list(seq))
    vms = []
    for t in range(32):
        vms.append(vm_for(needed(t)))
        step(t, "A", 0, True)
        if t >= PEEL - 1:
            assert not items, (t, len(items))
    a.lines, a.ldsq, items, seq = save
    state_q = list(a.ldsq)
    loopvm = [min(vms[t] for t in range(PEEL, 32) if (t - PEEL) % BODY == k) for k in range(BODY)]
    assert (32 - PEEL) % BODY == 0 and BODY % 2 == 0 and PEEL % 2 == 0 and (not PH or (BODY % (2*PH) == 0 and PEEL % (2*PH) == 0))

    a("s_cmp_lg_u32 s19, 0")
    a(f"s_cbranch_scc1 L_{name}_B")
    items0 = list(items)
    for prob in ("A", "B"):
        if prob == "B":
            a.label(f"L_{name}_B")
        items = list(items0)
        a.ldsq = list(state_q)
        for t in range(PEEL):
            step(t, prob, vms[t], False)
        a(f"s_mov_b32 s39, {(32-PEEL)//BODY}")
        a.label(f"L_{name}_loop{prob}")
        abl["on"] = True
        for k in range(BODY):
            step(PEEL + k, prob, loopvm[k], False, last="s_sub_u32 s39, s39, 1\ns_cmp_lg_u32 s39, 0" if k == BODY - 1 else None)
        abl["on"] = False
        a(f"s_cbranch_scc1 L_{name}_loop{prob}")
        a.ldsq = []
        a("s_waitcnt vmcnt(0) lgkmcnt(0)\ns_nop 7")
        stamp(a, 2, dbg)
        epilogue(a, prob)
        if prob == "A":
            a(f"s_branch L_{name}_fin")
    a.label(f"L_{name}_fin")
    if "stamp" in dbg:
        stamp_out(a, int(dbg.split("stamp")[1][0]))
    a.label(f"L_{name}_end")
    a("s_endpgm")
    return a.text(), kernel_desc(name, NV, NACC_OFF), LDS_TOTAL


def epilogue(a, prob):
    a(f"""
    s_and_b32 s28, s16, 1
    s_lshl_b32 s29, s18, 1
    s_add_u32 s28, s28, s29
    s_lshr_b32 s29, s16, 1
    s_lshl_b32 s29, s29, 2
    s_lshl_b32 s30, s17, 3
    s_add_u32 s29, s29, s30
    v_lshrrev_b32 v1, 4, v0
    v_lshlrev_b32 v1, 9, v1
    v_and_b32 v2, 15, v0
    v_lshl_add_u32 v4, v2, 4, v1
    v_and_b32 v2, 7, v0
    v_lshl_add_u32 v5, v2, 4, v1
    v_bfe_u32 v2, v0, 3, 1
    v_lshl_add_u32 v5, v2, 8, v5
    """)
    TB = 8
    n = 0

    def pack(dst, t0, t1):
        a(f"v_cvt_pk_bf16_f32 v{dst}, v{t0}, v{t0+1}")
        a(f"v_cvt_pk_bf16_f32 v{dst+1}, v{t0+2}, v{t0+3}")
        a(f"v_cvt_pk_bf16_f32 v{dst+2}, v{t1}, v{t1+1}")
        a(f"v_cvt_pk_bf16_f32 v{dst+3}, v{t1+2}, v{t1+3}")

    if prob == "A":
        a(f"""
        s_lshl_b32 s30, s28, 17
        s_lshl_b32 s31, s29, 11
        s_add_u32 s30, s30, s31
        s_add_u32 s30, s30, {WS_Q}
        s_add_u32 s31, s30, 4096
        s_lshl_b32 s32, s28, 18
        s_lshl_b32 s33, s29, 12
        s_add_u32 s32, s32, s33
        s_add_u32 s32, s32, {WS_KV}
        s_add_u32 s33, s32, 4096
        s_add_u32 s34, s32, 8192
        s_add_u32 s35, s32, 12288
        v_mov_b32 v1, {hex(f32bits(QSCALE))}
        """)
        for rt in range(8):
            tl, half = rt // 2, rt % 2
            for ct in range(2):
                for r in range(4):
                    a(f"v_mul_f32 v{acc(rt,ct)+r}, v1, v{acc(rt,ct)+r}")
            d = TB + (n % 6) * 4; n += 1
            pack(d, acc(rt, 0), acc(rt, 1))
            a(f"buffer_store_dwordx4 {vr(d,4)}, v4, s[12:15], s{30+tl//2} offen offset:{(tl%2)*2048+half*256}")
            d = TB + (n % 6) * 4; n += 1
            pack(d, acc(rt, 2), acc(rt, 3))
            a(f"buffer_store_dwordx4 {vr(d,4)}, v5, s[12:15], s{32+tl} offen offset:{half*128}")
            if half == 1:
                for dt in range(2):
                    d = TB + (n % 6) * 4; n += 1
                    pack(d, acc(rt - 1, 4 + dt), acc(rt, 4 + dt))
                    a(f"buffer_store_dwordx4 {vr(d,4)}, v4, s[12:15], s{32+tl} offen offset:{2048+dt*256}")
    else:
        a(f"""
        s_lshl_b32 s30, s28, 17
        s_lshl_b32 s31, s29, 11
        s_add_u32 s30, s30, s31
        s_add_u32 s30, s30, {WS_PQ}
        s_add_u32 s31, s30, 4096
        s_lshr_b32 s33, s29, 2
        s_lshl_b32 s32, s28, 4
        s_add_u32 s33, s33, s32
        s_lshl_b32 s32, s33, 12
        s_add_u32 s32, s32, {WS_KVP}
        s_lshl_b32 s33, s33, 7
        s_add_u32 s33, s33, {WS_ZP}
        v_mov_b32 v1, {hex(f32bits(LOG2E))}
        v_mov_b32 v2, {hex(f32bits(-LOG2E))}
        v_mov_b32 v3, {hex(f32bits(1e-6))}
        v_mov_b32 v28, 0x3f803f80
        v_mov_b32 v29, 0x3f803f80
        v_mov_b32 v30, 0x3f803f80
        v_mov_b32 v31, 0x3f803f80
        """)

        def phi(base):
            for r in range(4):
                a(f"v_fma_f32 v{24+r}, v{base+r}, v1, v2")
            for r in range(4):
                a(f"v_exp_f32 v{24+r}, v{24+r} clamp")
            for r in range(4):
                a(f"v_max_f32 v{base+r}, v{base+r}, v{24+r}")
            for r in range(4):
                a(f"v_add_f32 v{base+r}, v3, v{base+r}")
        for pr in range(4):
            r0, r1 = 2 * pr, 2 * pr + 1
            for rt in (r0, r1):
                for ct in (2, 3):
                    phi(acc(rt, ct))
            for dt in range(2):
                pack(TB + 4 * dt, acc(r0, 2 + dt), acc(r1, 2 + dt))
                pack(TB + 8 + 4 * dt, acc(r0, 4 + dt), acc(r1, 4 + dt))
            a("s_nop 1")
            for de in range(2):
                for dd in range(2):
                    dst = ar((de * 2 + dd) * 4, 4)
                    a(f"v_mfma_f32_16x16x32_bf16 {dst}, {vr(TB+4*dd,4)}, {vr(TB+8+4*de,4)}, " + ("0" if pr == 0 else dst))
            for dd in range(2):
                dst = ar(16 + dd * 4, 4)
                a(f"v_mfma_f32_16x16x32_bf16 {dst}, v[28:31], {vr(TB+4*dd,4)}, " + ("0" if pr == 0 else dst))
            for rt in (r0, r1):
                for ct in (0, 1):
                    phi(acc(rt, ct))
                d = acc(rt, 2)
                pack(d, acc(rt, 0), acc(rt, 1))
                a(f"buffer_store_dwordx4 {vr(d,4)}, v4, s[12:15], s{30+pr//2} offen offset:{(pr%2)*2048+(rt%2)*256}")
        a("v_lshlrev_b32 v6, 4, v0\nv_lshlrev_b32 v7, 2, v0")
        for k in range(4):
            a(f"buffer_store_dwordx4 {ar(4*k,4)}, v6, s[12:15], s32 offen offset:{k*1024}")
        a(f"""
        s_mov_b32 exec_hi, 0
        s_mov_b32 exec_lo, 0xffff
        buffer_store_dword a16, v7, s[12:15], s33 offen
        buffer_store_dword a20, v7, s[12:15], s33 offen offset:64
        s_mov_b64 exec, -1
        """)
```

```python
import sys
sys.path.insert(0, "gen")
import gen, gemm2, gemm3, attn3, attn4, oproj
def mk(path, k1kw, k2=attn3, k2kw={}, k3kw={}, stamps=False, k3=oproj, k1=gemm3):
    ks = []
    t, d, l = k1.qkv_kernel("qkv_kernel", dbg="stamp0" if stamps else "", **k1kw)
    ks.append(("qkv_kernel", t, d, 256, 256, l))
    t, d, l = k2.attn_kernel("attn_kernel", dbg="stamp1" if stamps else "", **k2kw)
    ks.append(("attn_kernel", t, d, 256, 512, l))
    t, d, l = k3.oproj_kernel("oproj_kernel", dbg="stamp2" if stamps else "", **k3kw)
    ks.append(("oproj_kernel", t, d, 256, getattr(k3, "BLOCK", 256), l))
    gen.build(ks, path)
if __name__ == "__main__":
    V = [dict(BODY=2), dict(BODY=2, rotmask=3), dict(BODY=2, rotmask=0, xrot=2), dict(BODY=2, NFIRST=5), dict(BODY=4), dict(BODY=2, rotmask=3, NFIRST=8)]
    for i, v in enumerate(V):
        mk(f"v{i+1}.s", v)
```

```python
from asmlib import *
from gemm2 import MB, WS_OA, WS_OB, WS_SIZE, stamp, stamp_out

R = 10
SLOT = 16384
LDS_TOTAL = R * SLOT

V_L16 = 2
V_OW = 3
V_RA = 5
V_RB = 11
V_T = 14
FR = 20
ACC = 84
NV = 148


def acc(mt, nt):
    return ACC + (mt * 4 + nt) * 4


def fa(b, nt):
    return FR + b * 32 + nt * 4


def fb(b, mt):
    return FR + b * 32 + 16 + mt * 4


def oproj_kernel(name, dbg="", BAR=2, NFIRST=2, U=R, LP=None, ROT=None, CPF=None, DRAIN=True, BS=1, RP=1, RO=None, TO=None):
    a = Asm()
    a.raw(kernel_header(name))
    a(f"""
    s_cmp_ge_u32 s2, 256
    s_cbranch_scc1 L_{name}_end
    """)
    if "stamp" in dbg:
        a("s_memrealtime s[40:41]\ns_memtime s[42:43]")
    T = V_T
    a(f"""
    s_load_dwordx2 s[20:21], s[0:1], 16
    s_load_dwordx2 s[22:23], s[0:1], 40
    s_load_dwordx2 s[4:5], s[0:1], 48
    s_load_dwordx2 s[12:13], s[0:1], 64
    v_lshrrev_b32 v1, 6, v0
    v_and_b32 v0, 63, v0
    s_bfe_u32 s19, s2, 0x10002
    v_readfirstlane_b32 s16, v1
    s_and_b32 s17, s2, 3
    s_lshl_b32 s17, s17, 2
    s_bfe_u32 s28, s2, 0x20003
    s_add_u32 s17, s17, s28
    s_lshr_b32 s18, s2, 5
    v_lshlrev_b32 v{V_L16}, 4, v0
    s_mov_b32 s14, {WS_SIZE}
    s_mov_b32 s15, 0x20000
    s_mov_b32 s10, {2*MB}
    s_mov_b32 s11, 0x20000
    s_mov_b32 s6, {8*MB}
    s_mov_b32 s7, 0x20000
    """)
    if CPF is not None:
        code_prefetch(a, name, 2, CPF, 19, 62)
    if "samer" in dbg:
        a("s_and_b32 s17, s17, 12")
    if "samec" in dbg:
        a("s_mov_b32 s18, 0")
    a(f"""
    s_lshl_b32 s24, s17, 2
    s_add_u32 s24, s24, s16
    s_lshl_b32 s24, s24, 16
    s_lshl_b32 s28, s19, 22
    s_add_u32 s24, s24, s28
    s_add_u32 s24, s24, {WS_OA - 2048}
    s_lshr_b32 s28, s16, 1
    s_lshl_b32 s28, s28, 4
    s_and_b32 s29, s16, 1
    s_lshl_b32 s30, s29, 2
    s_add_u32 s28, s28, s30
    s_lshl_b32 s28, s28, 11
    s_lshl_b32 s30, s18, 8
    s_add_u32 s28, s28, s30
    s_lshl_b32 s29, s29, 1
    v_bfe_u32 v1, v0, 2, 2
    v_lshlrev_b32 v1, 11, v1
    v_lshrrev_b32 v{T}, 4, v0
    v_lshl_add_u32 v1, v{T}, 6, v1
    v_and_b32 v{T}, 3, v0
    v_xor_b32 v{T}, s29, v{T}
    v_lshl_add_u32 v1, v{T}, 4, v1
    v_add_u32 v{V_OW}, s28, v1
    v_add_u32 v{V_OW+1}, {8*2048-1024}, v{V_OW}
    s_mov_b32 s25, 0
    s_lshl_b32 s26, s16, 12
    s_mov_b32 m0, s26
    """)
    if ROT:
        ra, rc, rx = ROT
        a(f"""
        s_mul_i32 s27, s17, {ra}
        s_mul_i32 s28, s18, {rc}
        s_add_u32 s27, s27, s28
        s_and_b32 s28, s2, 7
        s_mul_i32 s28, s28, {rx}
        s_add_u32 s27, s27, s28
        s_and_b32 s27, s27, 31
        s_lshl_b32 s25, s27, 16
        s_lshl_b32 s27, s27, 11
        s_mov_b32 s31, s24
        s_add_u32 s24, s31, s27
        """)
    a(f"""
    s_waitcnt lgkmcnt(0)
    s_cmp_eq_u32 s19, 0
    s_cselect_b32 s8, s20, s22
    s_cselect_b32 s9, s21, s23
    """)

    def dma(t):
        out = [f"buffer_load_dwordx4 v{V_OW}, s[8:11], s25 offen lds",
               f"buffer_load_dwordx4 v{V_OW+1}, s[8:11], s25 offen offset:1024 lds",
               f"buffer_load_dwordx4 v{V_L16}, s[12:15], s24 offen offset:2048 lds",
               f"buffer_load_dwordx4 v{V_L16}, s[12:15], s24 offen offset:3072 lds"]
        nxt = ((t + 1) % R) * SLOT
        if ROT:
            out.append(f"s_add_u32 s25, s25, 65536\ns_and_b32 s25, s25, {2*MB-1}\ns_lshr_b32 s27, s25, 5\ns_add_u32 s24, s31, s27\ns_add_u32 m0, s26, {nxt}")
        else:
            out.append(f"s_add_u32 s25, s25, 65536\ns_add_u32 s24, s24, 2048\ns_add_u32 m0, s26, {nxt}")
        return out

    seq = []
    for t in range(NFIRST):
        for x in dma(t):
            a(x)
        a("s_nop 0")
        seq += [t] * 4
    a(f"""
    v_lshrrev_b32 v1, 4, v0
    v_lshlrev_b32 v{T}, 12, v1
    v_bfe_u32 v{T+1}, v0, 2, 2
    v_lshl_add_u32 v{T}, v{T+1}, 6, v{T}
    v_and_b32 v{T+1}, 3, v0
    v_lshl_add_u32 v{T}, v{T+1}, 3, v{T}
    v_and_b32 v1, 1, v1
    v_lshl_add_u32 v{T}, v1, 5, v{T}
    s_and_b32 s28, s16, 1
    s_lshl_b32 s28, s28, 9
    v_add_u32 v{V_RA}, s28, v{T}
    v_xor_b32 v{V_RA+1}, 32, v{V_RA}
    v_add_u32 v{V_RA+2}, 0x10000, v{V_RA}
    v_add_u32 v{V_RA+3}, 0x10000, v{V_RA+1}
    v_add_u32 v{V_RA+4}, 0x20000, v{V_RA}
    v_add_u32 v{V_RA+5}, 0x20000, v{V_RA+1}
    v_lshrrev_b32 v1, 4, v0
    v_lshlrev_b32 v1, 9, v1
    v_and_b32 v{T}, 15, v0
    v_lshl_add_u32 v1, v{T}, 4, v1
    s_lshr_b32 s28, s16, 1
    s_lshl_b32 s28, s28, 13
    s_add_u32 s28, s28, 2048
    v_add_u32 v{V_RB}, s28, v1
    v_add_u32 v{V_RB+1}, 0x10000, v{V_RB}
    v_add_u32 v{V_RB+2}, 0x20000, v{V_RB}
    """)
    for t in range(NFIRST, U):
        for x in dma(t):
            a(x)
        a("s_nop 0")
        seq += [t] * 4

    def epi_addr():
        a(f"""
        v_and_b32 v1, 15, v0
        v_lshlrev_b32 v1, 12, v1
        v_bfe_u32 v{T}, v0, 4, 1
        v_lshl_add_u32 v1, v{T}, 5, v1
        v_lshrrev_b32 v{T}, 5, v0
        v_lshl_add_u32 v1, v{T}, 4, v1
        s_lshl_b32 s28, s17, 19
        s_lshr_b32 s29, s16, 1
        s_lshl_b32 s29, s29, 18
        s_add_u32 s28, s28, s29
        s_lshl_b32 s29, s19, 11
        s_add_u32 s28, s28, s29
        s_lshl_b32 s29, s18, 8
        s_add_u32 s28, s28, s29
        s_and_b32 s29, s16, 1
        s_lshl_b32 s29, s29, 7
        s_add_u32 s28, s28, s29
        """)

    if TO is not None:
        epi_addr()
        a(f"v_and_b32 v{T+1}, 3, v0\nv_lshlrev_b32 v{T+1}, 16, v{T+1}")

    def vm_for(t):
        last = max(i for i, s in enumerate(seq) if s == t)
        return len(seq) - 1 - last

    def reads(t):
        b = t % 2
        so = (t % R) * SLOT
        bank, so = so >> 16, so & 0xffff
        A_ = []
        for nt in range(4):
            for tt in range(2):
                A_.append((f"ds_read_b64_tr_b16 {vr(fa(b,nt)+2*tt,2)}, v{V_RA+2*bank+(nt&1)} offset:{so+tt*1024+(nt//2)*256}", fa(b, nt) + 2 * tt, 2))
        B_ = [(f"ds_read_b128 {vr(fb(b,mt),4)}, v{V_RB+bank} offset:{so+(mt//2)*4096+(mt&1)*256}", fb(b, mt), 4) for mt in range(4)]
        return [B_[0]] + A_ + B_[1:]

    a(f"s_waitcnt vmcnt({vm_for(0)})\ns_barrier")
    stamp(a, 1, dbg)
    if "stamp" in dbg:
        a("s_waitcnt lgkmcnt(0)")
    for r in reads(0):
        a.ds(*r)

    for t in range(32):
        b = t % 2
        rd = reads(t + 1) if t < 31 else []
        items = []
        if LP and t + U < 32:
            assert U <= R - 1 - BS
            items = dma(t + U)
        m = 0
        bar = t % BS == 0 and t < 31
        if t == TO:
            a(f"buffer_load_dword v{T+2}, v{T+1}, s[4:7], s28 offen")
            seq.append(-1)
        for mt in range(4):
            for nt in range(4):
                a.need((fa(b, nt), 4), (fb(b, mt), 4))
                if "nomf" not in dbg:
                    a(f"v_mfma_f32_16x16x32_bf16 {vr(acc(mt,nt),4)}, {vr(fa(b,nt),4)}, {vr(fb(b,mt),4)}, " + ("0" if t == 0 else vr(acc(mt, nt), 4)))
                if m == BAR and bar:
                    if DRAIN:
                        a.lds_drain()
                    a(f"s_waitcnt vmcnt({vm_for(min(t+BS, 31))})")
                    if "nobar" not in dbg:
                        a("s_barrier")
                if LP and items and m in LP:
                    x = items.pop(0)
                    if not ("nodma" in dbg or ("now" in dbg and "s[8:11]" in x) or ("noo" in dbg and "s[12:15]" in x)):
                        a(x)
                    seq.append(t + U)
                    if len(items) == 1:
                        a(items.pop(0))
                if m > BAR or (not bar and m >= (RO if RO is not None else BAR + 1)):
                    for _ in range(RP if not (LP and m in LP) else 1):
                        if rd:
                            x = rd.pop(0)
                            if "nord" not in dbg:
                                a.ds(*x)
                m += 1
        assert not rd and not items
    stamp(a, 2, dbg)
    if TO is None:
        epi_addr()
    n = 0
    for mt in range(4):
        for pr in range(2):
            d = FR + 4 * n
            n += 1
            x, y = acc(mt, 2 * pr), acc(mt, 2 * pr + 1)
            a(f"""
            v_cvt_pk_bf16_f32 v{d}, v{x}, v{x+1}
            v_cvt_pk_bf16_f32 v{d+1}, v{x+2}, v{x+3}
            v_cvt_pk_bf16_f32 v{d+2}, v{y}, v{y+1}
            v_cvt_pk_bf16_f32 v{d+3}, v{y+2}, v{y+3}
            s_nop 1
            v_permlane16_swap_b32 v{d}, v{d+2}
            v_permlane16_swap_b32 v{d+1}, v{d+3}
            buffer_store_dwordx4 {vr(d,4)}, v1, s[4:7], s28 offen offset:{pr*64}
            """)
        if mt < 3:
            a("s_add_u32 s28, s28, 65536")
    if TO is not None:
        a("s_waitcnt vmcnt(8)")
    if "stamp" in dbg:
        stamp_out(a, int(dbg.split("stamp")[1][0]))
    a.label(f"L_{name}_end")
    a("s_endpgm")
    return a.text(), kernel_desc(name, NV, NV), LDS_TOTAL
```

```python
import re, sys
def sflags(src, dst, fl):
    out = []
    k = -1
    for ln in open(src):
        if re.match(r"^(qkv|attn|oproj)_kernel:", ln):
            k += 1
        if "buffer_store_dword" in ln and k >= 0 and fl[k]:
            ln = ln.rstrip("\n") + " " + fl[k] + "\n"
        out.append(ln)
    open(dst, "w").write("".join(out))
if __name__ == "__main__":
    V = {"x1": ("sc1",)*3, "x2": ("sc0 sc1",)*3, "x3": ("nt",)*3, "x4": ("nt sc1",)*3, "x5": ("sc0 sc1 nt",)*3}
    for n, f in V.items():
        sflags("w3.s", f"dbg/{n}.s", f)
        sflags("w3s.s", f"dbg/{n}s.s", f)
```

```python
import sys
sys.path.insert(0, "gen")
from mk import mk
from sflag import sflags
W = "sc0 sc1"
K3 = dict(U=5, LP=(0,4,8,12), ROT=(0,0,4), CPF=1)
def mkg(n, k1kw, fl=(W, W, W), **kw):
    d = dict(BODY=2, NFIRST=5, CPF=2); d.update(k1kw)
    if "k3kw" not in kw: kw["k3kw"] = K3
    mk("x.s", d, **kw)
    sflags("x.s", f"dbg/{n}.s", fl)
if __name__ == "__main__":
    for i, v in enumerate(eval(sys.argv[2])):
        v = dict(v); kw = {}
        if "mod" in v: kw["k1"] = __import__(v.pop("mod"))
        if "stamps" in v: kw["stamps"] = v.pop("stamps")
        if "k3" in v: kw["k3"] = __import__(v.pop("k3"))
        if "k3kw" in v: kw["k3kw"] = v.pop("k3kw")
        if "k2kw" in v: kw["k2kw"] = v.pop("k2kw")
        mkg(f"{sys.argv[1]}{i+1}", v, **kw)
```
